```python
import torch

def _softmax(x, axis=-1):
    return torch.softmax(x, dim=axis)
def _gelu(x):
    return torch.nn.functional.gelu(x, approximate="tanh")
def _silu(x):
    return torch.nn.functional.silu(x)
def _sigmoid(x):
    return torch.sigmoid(x)
def _layernorm(x, axis=-1, eps=1e-5):
    m = x.mean(dim=axis, keepdim=True)
    v = x.var(dim=axis, keepdim=True, unbiased=False)
    return (x - m) / torch.sqrt(v + eps)
def _scatter_add(tgt, idx, src, axis=0):
    return tgt.clone().index_add_(axis, idx, src)
def _segment_sum(src, seg, n):
    out = torch.zeros((n,) + src.shape[1:], dtype=src.dtype)
    return out.index_add_(0, seg, src)
def _pad(x, pw):
    flat = tuple(v for pair in reversed(pw) for v in pair)
    return torch.nn.functional.pad(x, flat)

kernel_name = 'concat_heads__compressed_kv_cla__compressed_kv_cla__decode'

def setup_inputs():

    _w = (lambda a: (lambda t: t.to(torch.bfloat16) if t.is_floating_point() else t)(torch.as_tensor(a)))
    def _A_setup():
        B, H, Sq, Sk, D, M = 1, 32, 1, 4096, 128, 640
        Dc = 4 * D
        return {
            "x": _w((lambda *s: torch.randn(*s, dtype=torch.bfloat16) * 3.2)(B, Sq, M)),
            "c_kv": _w((lambda *s: torch.randn(*s, dtype=torch.bfloat16) * 0.05)(B, Sk, Dc)),
            "w_q": _w((lambda *s: torch.randn(*s, dtype=torch.bfloat16) * 3.2)(M, H, D) * (M ** -0.5)),
            "w_uk": _w((lambda *s: torch.randn(*s, dtype=torch.bfloat16) * 3.2)(Dc, H, D) * (Dc ** -0.5)),
            "w_uv": _w((lambda *s: torch.randn(*s, dtype=torch.bfloat16) * 0.05)(Dc, H, D) * (Dc ** -0.5)),
            "w_o": _w((lambda *s: torch.randn(*s, dtype=torch.bfloat16) * 0.05)(H, D, M) * ((H * D) ** -0.5)),
        }
    _A_in = _A_setup()

    def _B_setup():
        B, H, Sq, Sk, D, M = 1, 32, 1, 4096, 128, 640
        Dc = 4 * D
        return {
            "x": _w((lambda *s: torch.randn(*s, dtype=torch.bfloat16) * 3.2)(B, Sq, M)),
            "c_kv": _w((lambda *s: torch.randn(*s, dtype=torch.bfloat16) * 0.05)(B, Sk, Dc)),
            "w_q": _w((lambda *s: torch.randn(*s, dtype=torch.bfloat16) * 3.2)(M, H, D) * (M ** -0.5)),
            "w_uk": _w((lambda *s: torch.randn(*s, dtype=torch.bfloat16) * 3.2)(Dc, H, D) * (Dc ** -0.5)),
            "w_uv": _w((lambda *s: torch.randn(*s, dtype=torch.bfloat16) * 0.05)(Dc, H, D) * (Dc ** -0.5)),
            "w_o": _w((lambda *s: torch.randn(*s, dtype=torch.bfloat16) * 0.05)(H, D, M) * ((H * D) ** -0.5)),
        }
    _B_in = _B_setup()

    return {
        "A_x": _A_in["x"],
        "A_c_kv": _A_in["c_kv"],
        "A_w_q": _A_in["w_q"],
        "A_w_uk": _A_in["w_uk"],
        "A_w_uv": _A_in["w_uv"],
        "A_w_o": _A_in["w_o"],
        "B_x": _B_in["x"],
        "B_c_kv": _B_in["c_kv"],
        "B_w_q": _B_in["w_q"],
        "B_w_uk": _B_in["w_uk"],
        "B_w_uv": _B_in["w_uv"],
        "B_w_o": _B_in["w_o"],
    }

def reference(A_x, A_c_kv, A_w_q, A_w_uk, A_w_uv, A_w_o, B_x, B_c_kv, B_w_q, B_w_uk, B_w_uv, B_w_o):
    def _A_ref(x, c_kv, w_q, w_uk, w_uv, w_o):
        B, Sq, M = x.shape[0], x.shape[1], x.shape[2]
        Sk = c_kv.shape[1]
        H, D = w_q.shape[1], w_q.shape[2]
        q = torch.einsum("bqm,mhd->bhqd", x, w_q)
        k = torch.einsum("bkc,chd->bhkd", c_kv, w_uk)
        v = torch.einsum("bkc,chd->bhkd", c_kv, w_uv)
        scores = torch.einsum("bhqd,bhkd->bhqk", q, k) * (D ** -0.5)
        off = Sk - Sq
        qi = torch.arange(Sq)[:, None]
        kj = torch.arange(Sk)[None, :]
        cmask = kj <= (qi + off)
        scores = torch.where(cmask[None, None], scores, -1e9)
        p = _softmax(scores, axis=-1)
        ctx = torch.einsum("bhqk,bhkd->bhqd", p, v)
        return torch.einsum("bhqd,hdm->bqm", ctx, w_o)

    def _B_ref(x, c_kv, w_q, w_uk, w_uv, w_o):
        B, Sq, M = x.shape[0], x.shape[1], x.shape[2]
        Sk = c_kv.shape[1]
        H, D = w_q.shape[1], w_q.shape[2]
        q = torch.einsum("bqm,mhd->bhqd", x, w_q)
        k = torch.einsum("bkc,chd->bhkd", c_kv, w_uk)
        v = torch.einsum("bkc,chd->bhkd", c_kv, w_uv)
        scores = torch.einsum("bhqd,bhkd->bhqk", q, k) * (D ** -0.5)
        off = Sk - Sq
        qi = torch.arange(Sq)[:, None]
        kj = torch.arange(Sk)[None, :]
        cmask = kj <= (qi + off)
        scores = torch.where(cmask[None, None], scores, -1e9)
        p = _softmax(scores, axis=-1)
        ctx = torch.einsum("bhqk,bhkd->bhqd", p, v)
        return torch.einsum("bhqd,hdm->bqm", ctx, w_o)

    a = _A_ref(A_x, A_c_kv, A_w_q, A_w_uk, A_w_uv, A_w_o)
    b = _B_ref(B_x, B_c_kv, B_w_q, B_w_uk, B_w_uv, B_w_o)
    return torch.concatenate([a, b], axis=-1)
```

```python
import re

def _regs(tok):
    tok = tok.strip()
    tok = re.sub(r'^-|^abs\(|\)$|^\|', '', tok).strip('|')
    m = re.fullmatch(r'([vas])\[(\d+):(\d+)\]', tok)
    if m:
        return {f"{m.group(1)}{i}" for i in range(int(m.group(2)), int(m.group(3)) + 1)}
    m = re.fullmatch(r'([vas])(\d+)', tok)
    if m:
        return {tok}
    if tok in ('vcc', 'vcc_lo', 'vcc_hi'):
        return {'vcc'}
    if tok in ('exec', 'exec_lo', 'exec_hi'):
        return {'exec'}
    if tok == 'm0':
        return {'m0'}
    return set()

TRANS = ('v_exp_f32', 'v_log_f32', 'v_rcp_f32', 'v_rsq_f32', 'v_sqrt_f32', 'v_sin_f32', 'v_cos_f32')

class Ins:
    def __init__(s, text):
        s.text = text
        t = text.split(';')[0].strip()
        parts = t.split(None, 1)
        s.op = parts[0]
        rest = parts[1] if len(parts) > 1 else ''
        ops = [o.strip() for o in re.split(r',(?![^\[]*\])', rest)] if rest else []
        mods = ''
        if ops:
            sp = ops[-1].split(None, 1)
            ops[-1] = sp[0]
            mods = sp[1] if len(sp) > 1 else ''
        s.ops = ops; s.mods = mods
        op = s.op
        s.mfma = op.startswith('v_mfma')
        s.valu = op.startswith('v_') and not s.mfma
        s.trans = any(op.startswith(x) for x in TRANS)
        s.vmem = op.startswith(('buffer_', 'global_', 'flat_'))
        s.ds = op.startswith('ds_')
        s.salu = op.startswith('s_')
        s.perml = op.startswith('v_permlane')
        s.rdlane = op.startswith(('v_readlane', 'v_readfirstlane'))
        s.dpp = '_dpp' in op or 'row_' in mods or 'quad_perm' in mods
        s.ldsdma = s.vmem and (re.search(r'\blds\b', mods) is not None or '_lds_' in op)
        s.w = set(); s.r = set(); s.srcc = set(); s.ab = set(); s.stdata = set()
        R = [_regs(o) for o in ops]
        if s.mfma:
            s.w = R[0]; s.ab = R[1] | R[2]; s.srcc = R[3]; s.r = s.ab | s.srcc
            s.passes = 8 if '32x32x16' in op else 4
        elif s.valu:
            if op.startswith('v_cmp'):
                s.w = R[0]; s.r = set().union(*R[1:])
                if op.startswith('v_cmpx'): s.w |= {'exec'}
            elif s.perml:
                s.w = R[0] | R[1]; s.r = R[0] | R[1]
            else:
                s.w = set(R[0]); s.r = set().union(*R[1:]) if len(R) > 1 else set()
                if re.match(r'v_(add|sub|subrev|addc|subb)_co', op):
                    s.w |= R[1]; s.r = set().union(*R[2:])
                if op.startswith(('v_fmac', 'v_dot2c', 'v_writelane', 'v_pk_fmac')): s.r |= R[0]
                if op.startswith('v_cndmask') and len(ops) == 3: s.r |= {'vcc'}
                if s.dpp: s.r |= R[0]
        elif s.vmem:
            isst = '_store' in op or '_atomic' in op
            if s.ldsdma:
                s.r = set().union(*R) | {'m0'}
            elif isst:
                s.r = set().union(*R)
                if op.startswith('buffer_'): data = R[0]
                else: data = R[1]
                if 'x4' in op or 'x3' in op: s.stdata = data
                if '_atomic' in op and 'sc0' in mods:
                    s.w = R[0]
            else:
                s.w = R[0]; s.r = set().union(*R[1:])
        elif s.ds:
            if op.startswith(('ds_read', 'ds_bpermute', 'ds_permute', 'ds_swizzle')):
                s.w = R[0]; s.r = set().union(*R[1:])
            else:
                s.r = set().union(*R)
        elif s.salu:
            if op.startswith(('s_cmp', 's_cbranch', 's_branch', 's_waitcnt', 's_nop', 's_barrier', 's_endpgm', 's_sleep', 's_setprio', 's_bitcmp')):
                s.r = set().union(*R) if R else set()
            else:
                s.w = set(R[0]) if R else set(); s.r = set().union(*R[1:]) if len(R) > 1 else set()
                if 'saveexec' in op: s.w |= {'exec'}
        s.states = 1
        if op == 's_nop': s.states = int(ops[0], 0) + 1

def need(p, c):
    n = 0
    vw = {x for x in p.w if x[0] in 'va' and x != 'vcc'}
    sw = {x for x in p.w if x[0] == 's' or x == 'vcc'}
    if p.valu:
        if vw & c.r:
            if c.mfma: n = max(n, 2)
            if c.perml or c.dpp: n = max(n, 2)
            if c.rdlane: n = max(n, 1)
            if p.trans and not c.trans: n = max(n, 1)
        if sw & c.r:
            if c.valu: n = max(n, 4 if c.op.startswith(('v_readlane', 'v_writelane')) else 2)
            if c.vmem: n = max(n, 5)
            if c.salu: n = max(n, 1)
        if 'exec' in p.w and (c.mfma or c.rdlane or c.perml or c.dpp): n = max(n, 5)
    if p.mfma:
        big = 8 if p.passes == 4 else 12
        if c.mfma:
            if p.w & c.ab: n = max(n, big)
            if p.w & c.srcc and not (p.w == c.srcc and p.passes == c.passes): n = max(n, big - 2)
            if p.w & c.w and not (p.w == c.srcc): n = max(n, big)
        else:
            if p.w & (c.r | c.w): n = max(n, big)
        if c.valu and (p.srcc & c.w): n = max(n, 3 if p.passes == 4 else 7)
    if p.stdata and (p.stdata & c.w): n = max(n, 2)
    if p.salu and 'm0' in p.w and c.ldsdma: n = max(n, 1)
    return n

class Asm:
    def __init__(s):
        s.out = []
        s.hist = []
        s.vm = []
        s.lg = []
        s.nins = 0
    def raw(s, t): s.out.append(t)
    def label(s, l):
        s.out.append(f"{l}:")
    def c(s, t): s.out.append(f"    ; {t}")
    def __call__(s, text, tag=None):
        for line in text.split('\n'):
            line = line.strip()
            if not line: continue
            if line.endswith(':'):
                s.label(line[:-1]); continue
            i = Ins(line)
            dist = 0; pad = 0
            for p in reversed(s.hist):
                k = need(p, i) - dist
                if k > pad: pad = k
                dist += p.states
                if dist > 24: break
            while pad > 0:
                k = min(pad, 16)
                nop = Ins(f"s_nop {k-1}")
                s.out.append(f"    s_nop {k-1}"); s.hist.append(nop); pad -= k; s.nins += 1
            s.out.append("    " + line); s.hist.append(i); s.nins += 1
            if len(s.hist) > 64: s.hist = s.hist[-40:]
            if i.vmem: s.vm.append(tag)
            if i.ds: s.lg.append(tag)
    def wait_vm(s, tag):
        idx = [k for k, t in enumerate(s.vm) if t == tag]
        if not idx: return
        n = len(s.vm) - 1 - idx[-1]
        assert n <= 63
        s(f"s_waitcnt vmcnt({n})")
        s.vm = s.vm[idx[-1] + 1:]
    def wait_lg(s, tag):
        idx = [k for k, t in enumerate(s.lg) if t == tag]
        if not idx: return
        n = len(s.lg) - 1 - idx[-1]
        n = min(n, 15)
        s(f"s_waitcnt lgkmcnt({n})")
        s.lg = s.lg[len(s.lg) - n:] if n else []
    def wait_vm_all(s):
        s("s_waitcnt vmcnt(0)"); s.vm = []
    def wait_lg_all(s):
        s("s_waitcnt lgkmcnt(0)"); s.lg = []
    def fence(s):
        s("s_nop 7"); s("s_nop 3")
    def text(s): return "\n".join(s.out) + "\n"
```

```python
import sys, os
sys.path.insert(0, os.path.dirname(__file__))
from asmlib import Asm

NAME = "concat_heads__compressed_kv_cla__compressed_kv_cla__decode_kernel"
P = dict(STM=0, STAMP=0, NT=1, NE=4, SPIN=200000, PF=1, SW=0)
for a in sys.argv[1:]:
    k, v = a.split("="); P[k] = int(v)
NT = " nt" if P["NT"] else ""
NE = P["NE"]; SPIN = P["SPIN"]; STAMP = P["STAMP"]

QA, EP, OP, QX, PO, ST, STAMPS = 0x0, 0x10000, 0x18000, 0x80000, 0x100000, 0x500000, 0x800000
NCLR = 16
STS = 16 if P["STM"] == 0 else 128
WSSZ = 0x900000
NS = 16
CKV_STRIDE = 1056
RED = 0; WST = RED + 8192; CL = WST + 64; CX = CL + 1024
QP = CX + 128; QB = QP + 2048; QO = QB + 256
IMG = 12288
assert QO + 256 <= IMG
XB = IMG + 67584
WUV, WO = IMG, IMG + 65536
LDS_BYTES = WO + 81920
assert LDS_BYTES <= 163840
SCALE = (128 ** -0.5) * 1.4426950408889634

import struct
def f2u(x): return struct.unpack("<I", struct.pack("<f", x))[0]

a = Asm()
hdr = open(os.path.join(os.path.dirname(__file__), "header.txt")).read()
a.raw(hdr.rstrip("\n"))
a.raw(f"; @launch grid=(256,1,1) block=(256,1,1) lds={LDS_BYTES}")
a.raw('.amdgcn_target "amdgcn-amd-amdhsa--gfx950"\n.text\n.globl %s\n.p2align 8\n.type %s,@function\n%s:' % (NAME, NAME, NAME))

def setexec(m):
    if m == -1: a("s_mov_b64 exec, -1")
    elif m < 64 or m == 0xffff and False: a(f"s_mov_b64 exec, {m}")
    else:
        a(f"s_mov_b32 exec_lo, 0x{m & 0xffffffff:x}")
        a(f"s_mov_b32 exec_hi, 0x{m >> 32:x}")

def stamp(i):
    if not STAMP: return
    a("s_memrealtime s[96:97]")
    a.wait_lg_all()
    a(f"v_writelane_b32 v250, s96, {i}")
    a(f"v_writelane_b32 v251, s97, {i}")

if STAMP:
    a("s_memrealtime s[98:99]")
a("s_cmp_ge_u32 s2, 256")
a("s_cbranch_scc1 L_end")
a("s_lshr_b32 s5, s2, 3")
a("s_add_u32 s6, s2, s5")
a("s_bfe_u32 s4, s6, 0x10002")
a("s_and_b32 s6, s6, 3")
a("s_mul_i32 s7, s4, 48")
a("s_load_dwordx2 s[12:13], s[0:1], s7 offset:16")
a("s_load_dwordx2 s[8:9], s[0:1], s7 offset:0")
a("s_load_dwordx2 s[16:17], s[0:1], s7 offset:24")
a("s_load_dwordx2 s[28:29], s[0:1], 112")
a("s_load_dwordx2 s[36:37], s[0:1], s7 offset:8")
a("s_load_dwordx2 s[38:39], s[0:1], s7 offset:32")
a("s_load_dwordx2 s[24:25], s[0:1], s7 offset:40")
a("s_load_dwordx2 s[32:33], s[0:1], 96")
a("s_load_dwordx2 s[50:51], s[0:1], 104")
a("v_lshrrev_b32 v4, 6, v0")
a("v_readfirstlane_b32 s3, v4")
a("v_and_b32 v0, 63, v0")
a("v_and_b32 v1, 15, v0")
a("v_lshrrev_b32 v2, 4, v0")
a("s_mov_b32 s10, 1280\ns_mov_b32 s11, 0x20000")
a("s_mov_b32 s14, 5242880\ns_mov_b32 s15, 0x20000")
a("s_mov_b32 s18, 4194304\ns_mov_b32 s19, 0x20000")
a("s_mov_b32 s22, 4194304\ns_mov_b32 s23, 0x20000")
a("s_mov_b32 s26, 5242880\ns_mov_b32 s27, 0x20000")
a(f"s_mov_b32 s30, {WSSZ}\ns_mov_b32 s31, 0x20000")
a("s_mov_b32 s34, 2560\ns_mov_b32 s35, 0x20000")
a("s_mul_i32 s54, s6, 160")
a("s_mul_i32 s55, s3, 40")
a("s_add_u32 s54, s54, s55")
a("s_lshl_b32 s58, s54, 1")
a("s_lshl_b32 s56, s54, 13")
a("s_lshl_b32 s57, s5, 8")
a("s_add_u32 s56, s56, s57")
a("v_mul_u32_u24 v3, 81920, v2")
a("v_lshl_add_u32 v3, v1, 4, v3")
a("v_mul_u32_u24 v4, 20, v2")
a("v_lshlrev_b32 v6, 4, v0")
a("s_lshl_b32 s61, s4, 5")
a("s_add_u32 s61, s61, s5")
a("v_mov_b32 v112, -1\nv_mov_b32 v113, -1\nv_mov_b32 v114, -1\nv_mov_b32 v115, -1")
a("s_waitcnt lgkmcnt(0)")
if STAMP:
    a("v_writelane_b32 v250, s98, 0\nv_writelane_b32 v251, s99, 0")
a(f"s_lshl_b32 s54, s4, 7\ns_add_u32 s54, s54, {EP}")
a("s_load_dwordx2 s[52:53], s[28:29], s54")
a("s_cmp_ge_u32 s6, 2")
a("s_cbranch_scc1 L_notC0")
a("s_lshl_b32 s54, s61, 1\ns_add_u32 s54, s54, s6\ns_mul_i32 s54, s54, 2560")
a("s_mul_i32 s55, s3, 640\ns_add_u32 s54, s54, s55")
a(f"s_add_u32 s54, s54, {OP}")
setexec(0xffffffffff)
a("buffer_store_dwordx4 v[112:115], v6, s[28:31], s54 offen sc1")
setexec(-1)
a("s_mov_b32 s20, s38\ns_mov_b32 s21, s39")
a("s_branch L_clr_done")
a("L_notC0:")
a("s_mov_b32 s20, s36\ns_mov_b32 s21, s37")
a("s_cmp_lg_u32 s6, 2\ns_cbranch_scc1 L_clr_done")
a("s_cmp_ge_u32 s5, 8\ns_cbranch_scc1 L_clr_done")
a("s_lshl_b32 s54, s4, 3\ns_add_u32 s54, s54, s5\ns_lshl_b32 s54, s54, 12")
a("s_lshl_b32 s55, s3, 10\ns_add_u32 s54, s54, s55")
if QA: a(f"s_add_u32 s54, s54, {QA}")
a("buffer_store_dwordx4 v[112:115], v6, s[28:31], s54 offen sc1")
a("buffer_load_dwordx4 v[10:13], v4, s[8:11], s58 offen")
a("buffer_load_dword v14, v4, s[8:11], s58 offen offset:16")
a("s_mov_b32 s59, s56")
for i in range(4):
    a(f"buffer_load_dwordx4 v[{32+4*i}:{35+4*i}], v3, s[12:15], s59 offen{NT}")
    a("s_add_u32 s59, s59, 8192")
a("s_waitcnt vmcnt(6)")
a("s_barrier")
a("s_cmp_lg_u32 s3, 0\ns_cbranch_scc1 L_wq_rest")
a("v_mov_b32 v7, 0\nv_mov_b32 v8, 1")
setexec(1)
a("global_atomic_add v7, v8, s[50:51] sc1")
setexec(-1)
a("s_branch L_wq_rest")
a("L_clr_done:")
a.vm = []
a("buffer_load_dwordx4 v[10:13], v4, s[8:11], s58 offen", "x")
a("buffer_load_dword v14, v4, s[8:11], s58 offen offset:16", "x")
a("s_mov_b32 s59, s56")
for i in range(4):
    a(f"buffer_load_dwordx4 v[{32+4*i}:{35+4*i}], v3, s[12:15], s59 offen{NT}", f"wq{i}")
    a("s_add_u32 s59, s59, 8192")
a("L_wq_rest:")
for i in range(4, 10):
    a(f"buffer_load_dwordx4 v[{32+4*i}:{35+4*i}], v3, s[12:15], s59 offen{NT}", f"wq{i}")
    if i < 9: a("s_add_u32 s59, s59, 8192")
a("v_lshlrev_b32 v5, 14, v1")
a("v_lshl_add_u32 v5, v2, 4, v5")
a("s_lshl_b32 s54, s6, 7\ns_lshl_b32 s55, s3, 5\ns_add_u32 s54, s54, s55\ns_lshl_b32 s54, s54, 13\ns_add_u32 s54, s54, s57")
a("s_add_u32 s55, s54, 8192")
for t in range(2):
    for s in range(4):
        r = 72 + (t * 4 + s) * 4
        a(f"buffer_load_dwordx4 v[{r}:{r+3}], v5, s[16:19], s{54+t} offen offset:{s*64}{NT}", "wuk")
if P["PF"]:
    a("s_getpc_b64 s[62:63]")
    a("L_pc:")
    a("s_lshr_b32 s54, s2, 3\ns_lshl_b32 s54, s54, 2\ns_add_u32 s54, s54, s3\ns_lshl_b32 s54, s54, 7")
    a("s_min_u32 s54, s54, L_end-L_pc-64")
    a("s_load_dword s64, s[62:63], s54 offset:0")
    a("s_load_dword s65, s[62:63], s54 offset:64")
a("s_cmp_ge_u32 s6, 2")
a("s_cbranch_scc1 L_parB")
a(f"s_lshl_b32 s40, s3, 11\ns_add_u32 s40, s40, {WUV}")
a("s_lshl_b32 s41, s3, 17\ns_add_u32 s41, s41, s57")
a("s_lshl_b32 s54, s6, 7\ns_add_u32 s41, s41, s54")
a("s_mov_b32 s42, 1024\ns_mov_b32 s43, 7168\ns_mov_b32 s44, 65536\ns_mov_b32 s45, 458752")
a("v_and_b32 v7, 7, v0\ns_lshl_b32 s54, s3, 1\nv_xor_b32 v7, s54, v7\nv_lshlrev_b32 v7, 4, v7")
a("v_lshrrev_b32 v9, 3, v0\nv_lshl_add_u32 v9, v9, 13, v7")
a("s_branch L_par_done")
a("L_parB:")
a("s_lshl_b32 s46, s5, 1\ns_add_u32 s46, s46, s6\ns_sub_u32 s46, s46, 2")
a(f"s_mul_i32 s40, s3, {16*CKV_STRIDE}\ns_add_u32 s40, s40, {IMG}")
a("s_lshl_b32 s41, s46, 16\ns_lshl_b32 s54, s3, 14\ns_add_u32 s41, s41, s54")
a(f"s_mov_b32 s42, {CKV_STRIDE}\ns_mov_b32 s43, {CKV_STRIDE}\ns_mov_b32 s44, 1024\ns_mov_b32 s45, 1024")
a("v_mov_b32 v9, v6")
a("L_par_done:")
def dma(k):
    a("s_mov_b32 m0, s40")
    a(f"s_add_u32 s40, s40, s{42+(k&1)}")
    a(f"buffer_load_dwordx4 v9, s[20:23], s41 offen{NT} lds", "dmaA")
    a(f"s_add_u32 s41, s41, s{44+(k&1)}")

for r in range(104, 112): a(f"v_mov_b32 v{r}, 0")
a.wait_vm("wq0")
stamp(1)
for t in range(5):
    a(f"v_lshlrev_b32 v{16+2*t}, 16, v{10+t}")
    a(f"v_and_b32 v{17+2*t}, 0xffff0000, v{10+t}")
vm_full = ["wq%d" % i for i in range(10)] + ["wuk"] * 8
for i in range(10):
    n = len(vm_full) - 1 - i
    a(f"s_waitcnt vmcnt({n})")
    xp = 16 + (i & ~1)
    sel = "op_sel_hi:[1,0,1]" if i % 2 == 0 else "op_sel:[0,1,0] op_sel_hi:[1,1,1]"
    for k in range(4):
        w = 32 + 4 * i + k; t = 112 + 2 * k
        a(f"v_lshlrev_b32 v{t}, 16, v{w}")
        a(f"v_and_b32 v{t+1}, 0xffff0000, v{w}")
    for k in range(4):
        t = 112 + 2 * k
        a(f"v_pk_fma_f32 v[{104+2*k}:{105+2*k}], v[{t}:{t+1}], v[{xp}:{xp+1}], v[{104+2*k}:{105+2*k}] {sel}")
a.vm = ["wuk"] * 8
for k in range(NE): dma(k)
for k in range(4):
    a(f"v_permlane32_swap_b32 v{104+2*k}, v{105+2*k}")
for k in range(4):
    a(f"v_add_f32 v{104+2*k}, v{104+2*k}, v{105+2*k}")
a("v_permlane16_swap_b32 v104, v106")
a("v_permlane16_swap_b32 v108, v110")
a("v_and_b32 v7, 1, v2\nv_lshlrev_b32 v7, 1, v7\nv_lshrrev_b32 v8, 1, v2\nv_or_b32 v7, v7, v8")
a("v_lshl_add_u32 v7, v1, 3, v7\nv_lshlrev_b32 v7, 2, v7")
a("s_lshl_b32 s54, s3, 9")
a(f"s_add_u32 s54, s54, {QP}")
a("v_add_u32 v7, s54, v7")
a("v_add_f32 v104, v104, v106")
a("v_add_f32 v108, v108, v110")
a.wait_lg_all()
a("s_add_u32 s52, s52, 1")
a("ds_write_b32 v7, v104")
a("ds_write_b32 v7, v108 offset:16")
a.wait_lg_all()
a("s_barrier")
stamp(2)
a("s_cmp_lg_u32 s3, 0\ns_cbranch_scc1 L_qx_done")
a("v_lshlrev_b32 v7, 3, v0")
for w in range(4):
    a(f"ds_read_b64 v[{112+2*w}:{113+2*w}], v7 offset:{QP+512*w}")
a("v_mov_b32 v122, s52\nv_mov_b32 v123, s53")
a(f"s_lshl_b32 s60, s61, 12\ns_add_u32 s60, s60, {QX}")
a("s_lshl_b32 s54, s6, 10\ns_add_u32 s54, s54, s60")
a.wait_lg_all()
a("v_pk_add_f32 v[112:113], v[112:113], v[114:115]")
a("v_pk_add_f32 v[116:117], v[116:117], v[118:119]")
a("v_pk_add_f32 v[120:121], v[112:113], v[116:117]")
a("buffer_store_dwordx4 v[120:123], v6, s[28:31], s54 offen sc1")
stamp(3)
a("s_mov_b32 s55, 0")
a("v_mov_b32 v8, 0")
a("L_qs:")
for jj in range(4):
    a(f"s_load_dwordx2 s[{64+2*jj}:{65+2*jj}], s[28:29], s60 offset:{jj*1024+1016} glc")
a("s_add_u32 s55, s55, 1")
a("s_waitcnt lgkmcnt(0)")
for jj in range(4): a(f"s_xor_b64 s[{64+2*jj}:{65+2*jj}], s[{64+2*jj}:{65+2*jj}], s[52:53]")
a("s_or_b64 s[64:65], s[64:65], s[66:67]\ns_or_b64 s[68:69], s[68:69], s[70:71]")
a(f"s_cmp_ge_u32 s55, {SPIN}\ns_cbranch_scc1 L_qg")
a("s_or_b64 s[64:65], s[64:65], s[68:69]\ns_cbranch_scc1 L_qs")
a("L_qg:")
for jj in range(4):
    a(f"buffer_load_dwordx4 v[{124+4*jj}:{127+4*jj}], v6, s[28:31], s60 offen offset:{1024*jj} sc1")
a("global_load_dword v140, v8, s[50:51] sc1")
a("s_add_u32 s55, s55, 1")
a("s_waitcnt vmcnt(0)")
a(f"v_xor_b32 v140, {NCLR}, v140")
for jj in range(4):
    a(f"v_xor_b32 v{126+4*jj}, s52, v{126+4*jj}\nv_xor_b32 v{127+4*jj}, s53, v{127+4*jj}")
    a(f"v_or3_b32 v140, v140, v{126+4*jj}, v{127+4*jj}")
a("v_cmp_ne_u32 vcc, 0, v140")
a(f"s_cmp_ge_u32 s55, {SPIN}\ns_cbranch_scc1 L_qg_ok")
a("s_cbranch_vccnz L_qg")
a("L_qg_ok:")
a("v_pk_add_f32 v[124:125], v[124:125], v[128:129]")
a("v_pk_add_f32 v[132:133], v[132:133], v[136:137]")
a("v_pk_add_f32 v[124:125], v[124:125], v[132:133]")
a("v_lshlrev_b32 v7, 2, v0")
a("v_cvt_pk_bf16_f32 v124, v124, v125")
a(f"ds_write_b32 v7, v124 offset:{QB}")
a.wait_lg_all()
a("L_qx_done:")
a("s_barrier")
stamp(4)
a("v_lshlrev_b32 v7, 4, v2")
for s in range(4):
    a(f"ds_read_b128 v[{120+4*s}:{123+4*s}], v7 offset:{QB+64*s}", f"q{s}")
a(f"s_waitcnt vmcnt({NE})")
a.vm = ["dmaA"] * NE
for s in range(4):
    a.wait_lg(f"q{s}")
    for t in range(2):
        r = 72 + (t * 4 + s) * 4
        c = "0" if s == 0 else f"v[{136+4*t}:{139+4*t}]"
        a(f"v_mfma_f32_16x16x32_bf16 v[{136+4*t}:{139+4*t}], v[{120+4*s}:{123+4*s}], v[{r}:{r+3}], {c}")
a(f"s_mov_b32 s54, 0x{f2u(SCALE):08x}")
a("s_lshl_b32 s55, s3, 6")
a("v_lshl_add_u32 v7, v1, 2, s55")
a("v_mul_f32 v136, s54, v136")
a("v_mul_f32 v140, s54, v140")
a("v_cvt_pk_bf16_f32 v136, v136, v140")
a("v_min_u32 v136, -2, v136")
setexec(0xffff)
a(f"ds_write_b32 v7, v136 offset:{QO}")
setexec(-1)
a.wait_lg_all()
a("s_barrier")
a("s_cmp_lg_u32 s3, 0\ns_cbranch_scc1 L_qa_done")
setexec(0xffff)
a(f"ds_read_b128 v[112:115], v6 offset:{QO}")
a("s_lshl_b32 s54, s61, 10\ns_lshl_b32 s55, s6, 8\ns_add_u32 s54, s54, s55")
if QA: a(f"s_add_u32 s54, s54, {QA}")
a.wait_lg_all()
vm_save = list(a.vm)
a("buffer_store_dwordx4 v[112:115], v6, s[28:31], s54 offen sc1")
setexec(-1)
a.vm = vm_save
a("L_qa_done:")
a("s_barrier")
stamp(5)
for k in range(NE, 16): dma(k)
a("s_cmp_lt_u32 s6, 2\ns_cbranch_scc1 L_roleC")

a("s_and_b32 s47, s3, 1\ns_lshr_b32 s48, s3, 1")
a("v_lshlrev_b32 v5, 10, v1\nv_lshl_add_u32 v5, v2, 4, v5")
a("s_lshl_b32 s54, s4, 15\ns_lshl_b32 s55, s47, 14\ns_add_u32 s54, s54, s55\ns_lshl_b32 s49, s48, 9\ns_add_u32 s54, s54, s49")
a(f"s_add_u32 s60, s54, {QA}")
def qloads():
    for s in range(8):
        a(f"buffer_load_dwordx4 v[{32+4*s}:{35+4*s}], v5, s[28:31], s60 offen offset:{64*s} sc1", "qa")
qloads()
a(f"s_add_u32 s54, s49, {IMG}")
a(f"v_mul_u32_u24 v7, {CKV_STRIDE}, v1\nv_lshl_add_u32 v7, v2, 4, v7\nv_add_u32 v7, s54, v7")
a(f"v_lshrrev_b32 v8, 2, v0\nv_mul_u32_u24 v8, {CKV_STRIDE}, v8\nv_and_b32 v10, 3, v0\nv_lshl_add_u32 v8, v10, 3, v8\nv_add_u32 v8, s54, v8")
a(f"s_lshl_b32 s54, s3, 12\ns_add_u32 s54, s54, {XB}\nv_add_u32 v11, s54, v6")
a(f"s_xor_b32 s54, s3, 2\ns_lshl_b32 s54, s54, 12\ns_add_u32 s54, s54, {XB}\nv_add_u32 v12, s54, v6")
a("s_waitcnt vmcnt(8)")
a("s_barrier")
stamp(6)
for s in range(8):
    for t in range(4):
        r = (t * 8 + s) * 4
        a(f"ds_read_b128 a[{r}:{r+3}], v7 offset:{t*16*CKV_STRIDE + s*64}", f"S{s}_{t}")
a("s_mov_b32 s55, 0")
a("L_qa_chk:")
a("s_waitcnt vmcnt(0)")
a("v_max3_u32 v10, v32, v33, v34")
for r in range(35, 63, 2):
    a(f"v_max3_u32 v10, v10, v{r}, v{r+1}")
a("v_max_u32 v10, v10, v63")
a("v_cmp_eq_u32 vcc, -1, v10")
a("s_cbranch_vccz L_qa_ok")
a("s_add_u32 s55, s55, 1")
a(f"s_cmp_ge_u32 s55, {SPIN}\ns_cbranch_scc1 L_qa_ok")
qloads()
a("s_branch L_qa_chk")
a("L_qa_ok:")
a.vm = []
stamp(7)
pv = [(T, s2, u) for s2 in range(2) for T in range(16) for u in range(2)]
pvi = 0
for s in range(8):
    for t in range(4):
        r = (t * 8 + s) * 4
        a.wait_lg(f"S{s}_{t}")
        c = "0" if s == 0 else f"v[{64+4*t}:{67+4*t}]"
        a(f"v_mfma_f32_16x16x32_bf16 v[{64+4*t}:{67+4*t}], a[{r}:{r+3}], v[{32+4*s}:{35+4*s}], {c}")
        for _ in range(2):
            T, s2, u = pv[pvi]; pvi += 1
            rr = 128 + (T * 2 + s2) * 4 + 2 * u
            a(f"ds_read_b64_tr_b16 a[{rr}:{rr+1}], v8 offset:{(32*s2+16*u)*CKV_STRIDE + T*32}", "pv")
for t in range(4):
    a(f"ds_write_b128 v11, v[{64+4*t}:{67+4*t}] offset:{t*1024}")
a.wait_lg_all()
a("s_barrier")
for t in range(4):
    a(f"ds_read_b128 v[{80+4*t}:{83+4*t}], v12 offset:{t*1024}", f"x{t}")
for t in range(4):
    a.wait_lg(f"x{t}")
    for k in range(0, 4, 2):
        a(f"v_pk_add_f32 v[{64+4*t+k}:{65+4*t+k}], v[{64+4*t+k}:{65+4*t+k}], v[{80+4*t+k}:{81+4*t+k}]")
a("v_max3_f32 v104, v64, v65, v66\nv_max3_f32 v105, v67, v68, v69\nv_max3_f32 v106, v70, v71, v72\nv_max3_f32 v107, v73, v74, v75")
a("v_max3_f32 v104, v104, v76, v77\nv_max3_f32 v105, v105, v78, v79\nv_max3_f32 v104, v104, v106, v107\nv_max_f32 v104, v104, v105")
a("v_mov_b32 v105, v104\nv_permlane32_swap_b32 v104, v105\nv_max_f32 v104, v104, v105")
a("v_mov_b32 v105, v104\nv_permlane16_swap_b32 v104, v105\nv_max_f32 v104, v104, v105")
for r in range(64, 80): a(f"v_sub_f32 v{r}, v{r}, v104")
for r in range(64, 80): a(f"v_exp_f32 v{r}, v{r}")
for k in range(8):
    a(f"v_cvt_pk_bf16_f32 v{96+k}, v{64+2*k}, v{65+2*k}")
a.wait_lg_all()
sums = []
for k in range(4): sums.append(f"v_pk_add_f32 v[{64+4*k}:{65+4*k}], v[{64+4*k}:{65+4*k}], v[{66+4*k}:{67+4*k}]")
sums += ["v_pk_add_f32 v[64:65], v[64:65], v[68:69]", "v_pk_add_f32 v[72:73], v[72:73], v[76:77]", "v_pk_add_f32 v[64:65], v[64:65], v[72:73]",
         "v_add_f32 v105, v64, v65", "v_mov_b32 v106, v105", "s_nop 0", "v_permlane32_swap_b32 v105, v106", "v_add_f32 v105, v105, v106",
         "v_mov_b32 v106, v105", "s_nop 0", "v_permlane16_swap_b32 v105, v106", "v_add_f32 v105, v105, v106",
         "v_mov_b32 v106, s52", "v_mov_b32 v107, s53", f"v_mul_u32_u24 v14, {64*STS}, v1"]
sums += ["v_lshlrev_b32 v13, 18, v2", "v_lshl_add_u32 v13, v1, 4, v13"]
a("s_lshl_b32 s54, s4, 5\ns_lshl_b32 s55, s47, 4\ns_add_u32 s54, s54, s55\ns_lshl_b32 s54, s54, 6\ns_add_u32 s54, s54, s46\ns_lshl_b32 s54, s54, 10\ns_add_u32 s54, s54, s49")
a(f"s_add_u32 s64, s54, {PO}\ns_add_u32 s65, s64, 65536\ns_add_u32 s66, s65, 65536\ns_add_u32 s67, s66, 65536")
a(f"s_lshl_b32 s54, s4, 5\ns_add_u32 s54, s54, s55\ns_lshl_b32 s54, s54, 6\ns_add_u32 s54, s54, s46\ns_mul_i32 s54, s54, {STS}\ns_add_u32 s68, s54, {ST}")
def pack_store(Q):
    L = []
    for r in range(4):
        d = 192 + (Q * 4 + r) * 4
        for k in range(4):
            T = 8 * Q + 2 * k
            L.append(f"v_cvt_pk_bf16_f32 v{d+k}, v{128+4*T+r}, v{128+4*(T+1)+r}")
        L.append(f"buffer_store_dwordx4 v[{d}:{d+3}], v13, s[28:31], s{64+r} offen offset:{Q*256} sc1")
    return L
fill = list(sums)
for T in range(16):
    for s2 in range(2):
        rr = 128 + (T * 2 + s2) * 4
        c = "0" if s2 == 0 else f"v[{128+4*T}:{131+4*T}]"
        a(f"v_mfma_f32_16x16x32_bf16 v[{128+4*T}:{131+4*T}], v[{96+4*s2}:{99+4*s2}], a[{rr}:{rr+3}], {c}")
        if T == 10 and s2 == 0: fill += pack_store(0)
        for _ in range(2):
            if fill: a(fill.pop(0))
for x in fill: a(x)
for x in pack_store(1): a(x)
stamp(8)
a.wait_vm_all()
a("s_barrier")
a("s_cmp_lg_u32 s48, 0\ns_cbranch_scc1 L_b_done")
setexec(0xffff)
a("buffer_store_dwordx4 v[104:107], v14, s[28:31], s68 offen sc1")
setexec(-1)
a("L_b_done:")
stamp(9)
a("s_cmp_lg_u32 s3, 0\ns_cbranch_scc1 L_fin")
a("s_cmp_ge_u32 s46, 20\ns_cbranch_scc1 L_fin")
a("v_lshrrev_b32 v7, 3, v0\nv_mul_u32_u24 v7, 2560, v7\nv_and_b32 v8, 7, v0\nv_lshl_add_u32 v7, v8, 4, v7")
a("s_mul_i32 s54, s4, 163840\ns_lshl_b32 s55, s46, 7\ns_add_u32 s54, s54, s55")
a(f"s_add_u32 s64, s54, {OP}")
for i in range(1, 8): a(f"s_add_u32 s{64+i}, s{63+i}, 20480")
a("s_mov_b32 s55, 0")
a("L_d_poll:")
for i in range(8):
    a(f"buffer_load_dwordx4 v[{32+4*i}:{35+4*i}], v7, s[28:31], s{64+i} offen sc1")
a("s_add_u32 s55, s55, 1")
a("s_waitcnt vmcnt(0)")
a("v_max3_u32 v10, v32, v33, v34")
for r in range(35, 63, 2):
    a(f"v_max3_u32 v10, v10, v{r}, v{r+1}")
a("v_max_u32 v10, v10, v63")
a("v_cmp_eq_u32 vcc, -1, v10")
a(f"s_cmp_ge_u32 s55, {SPIN}\ns_cbranch_scc1 L_d_ok")
a("s_cbranch_vccnz L_d_poll")
a("L_d_ok:")
for st, rng in ((16, range(32, 48, 2)), (8, range(32, 40, 2)), (4, range(32, 36, 2))):
    for r in rng:
        a(f"v_pk_add_f32 v[{r}:{r+1}], v[{r}:{r+1}], v[{r+st}:{r+st+1}]")
for k in range(4):
    a(f"v_add_f32_dpp v{36+k}, v{32+k}, v{32+k} row_ror:8 row_mask:0xf bank_mask:0xf")
for k in range(4): a(f"v_mov_b32 v{40+k}, v{36+k}")
for k in range(4): a(f"v_permlane16_swap_b32 v{36+k}, v{40+k}")
for k in range(4): a(f"v_add_f32 v{36+k}, v{36+k}, v{40+k}")
for k in range(4): a(f"v_mov_b32 v{40+k}, v{36+k}")
for k in range(4): a(f"v_permlane32_swap_b32 v{36+k}, v{40+k}")
for k in range(4): a(f"v_add_f32 v{36+k}, v{36+k}, v{40+k}")
a("v_cvt_pk_bf16_f32 v36, v36, v37\nv_cvt_pk_bf16_f32 v37, v38, v39")
a("s_mul_i32 s54, s4, 1280\ns_lshl_b32 s55, s46, 6\ns_add_u32 s54, s54, s55")
a("v_lshlrev_b32 v7, 3, v0")
setexec(0xff)
a("buffer_store_dwordx2 v[36:37], v7, s[32:35], s54 offen")
a("s_cmp_lg_u32 s46, 0\ns_cbranch_scc1 L_noep")
a(f"s_lshl_b32 s54, s4, 7\ns_add_u32 s54, s54, {EP}")
setexec(1)
a("buffer_store_dwordx2 v[106:107], v7, s[28:31], s54 offen sc1")
a("L_noep:")
setexec(-1)
stamp(10)
a("s_branch L_fin")

a("L_roleC:")
a.vm = ["dmaA"] * 16; a.lg = []
a("s_and_b32 s54, s3, 1\ns_lshl_b32 s54, s54, 3")
a("v_lshl_add_u32 v7, v2, 1, s54\nv_xor_b32 v7, v7, v1\nv_lshlrev_b32 v7, 4, v7")
a("v_mul_u32_u24 v8, 1280, v2\nv_add_u32 v7, v7, v8")
a("s_lshl_b32 s54, s5, 7\ns_lshl_b32 s55, s6, 6\ns_add_u32 s54, s54, s55\ns_lshl_b32 s55, s3, 2\ns_add_u32 s54, s54, s55\ns_mul_i32 s41, s54, 1280")
a(f"s_mul_i32 s40, s3, 5120\ns_add_u32 s40, s40, {WO}")
for aa in range(4):
    for cb in range(5):
        a("s_mov_b32 m0, s40")
        a(f"s_add_u32 s40, s40, {1024 if cb < 4 else 1024 + 15*1024}")
        a(f"buffer_load_dwordx4 v7, s[24:27], s41 offen{NT} lds", "wo")
        a(f"s_add_u32 s41, s41, {256 if cb < 4 else 16*1280 - 1024}")
a("v_lshrrev_b32 v8, 2, v1\nv_and_b32 v10, 3, v0")
a("v_lshrrev_b32 v11, 1, v10\ns_lshl_b32 s54, s3, 1\nv_add_u32 v11, s54, v11\nv_lshlrev_b32 v12, 1, v8\nv_xor_b32 v11, v11, v12\nv_lshlrev_b32 v11, 4, v11")
a("v_and_b32 v12, 1, v10\nv_lshl_add_u32 v11, v12, 3, v11")
a(f"v_lshl_add_u32 v11, v8, 11, v11\nv_lshl_add_u32 v11, v2, 7, v11\nv_add_u32 v11, {WUV}, v11")
a("v_and_b32 v13, 1, v2\nv_lshlrev_b32 v13, 3, v13\nv_lshl_add_u32 v13, v8, 1, v13")
a("v_lshrrev_b32 v14, 1, v10\ns_lshl_b32 s54, s3, 2\nv_add_u32 v14, s54, v14")
a("v_xor_b32 v15, v14, v13\nv_add_u32 v14, 2, v14\nv_xor_b32 v14, v14, v13")
a(f"v_mul_u32_u24 v16, 5120, v2\nv_lshl_add_u32 v16, v8, 8, v16\nv_lshl_add_u32 v16, v12, 3, v16\nv_add_u32 v16, {WO}, v16")
a("v_lshl_add_u32 v12, v15, 4, v16\nv_lshl_add_u32 v13, v14, 4, v16")
a("v_add_u32 v14, 40960, v12\nv_add_u32 v15, 40960, v13")
a.wait_vm("dmaA")
a("s_barrier")
stamp(6)
for s in range(16):
    for u in range(2):
        off = (128 * (s >> 2) + 64 * u + ((4 * s) & 15)) * 128
        a(f"ds_read_b64_tr_b16 a[{4*s+2*u}:{4*s+2*u+1}], v11 offset:{off}")
a(f"s_lshl_b32 s54, s61, 6\ns_lshl_b32 s55, s3, 4\ns_add_u32 s54, s54, s55\ns_mul_i32 s54, s54, {STS}")
a(f"s_add_u32 s60, s54, {ST}")
a("s_mov_b32 s55, 0")
SB = 36
a("s_mov_b32 s8, s52\ns_mov_b32 s9, s53\ns_mov_b32 s12, s60\ns_mov_b32 s13, s61\ns_mov_b32 s16, 0")
a("L_st:")
if STS == 16:
    for i in range(4):
        a(f"s_load_dwordx16 s[{SB+16*i}:{SB+16*i+15}], s[28:29], s12 offset:{64*i} glc")
else:
    for i in range(16):
        a(f"s_load_dwordx4 s[{SB+4*i}:{SB+4*i+3}], s[28:29], s12 offset:{STS*i} glc")
a("s_add_u32 s16, s16, 1")
a.wait_lg_all()
for i in range(16):
    r = SB + 4 * i + 2
    a(f"s_xor_b64 s[{r}:{r+1}], s[{r}:{r+1}], s[8:9]")
    if i: a(f"s_or_b64 s[{SB+2}:{SB+3}], s[{SB+2}:{SB+3}], s[{r}:{r+1}]")
a(f"s_cmp_ge_u32 s16, {SPIN}\ns_cbranch_scc1 L_st_ok")
a(f"s_cmp_lg_u64 s[{SB+2}:{SB+3}], 0\ns_cbranch_scc1 L_st")
a("L_st_ok:")
a("s_lshl_b32 s17, s13, 6\ns_lshl_b32 s16, s3, 4\ns_add_u32 s17, s17, s16\ns_lshl_b32 s17, s17, 10")
a(f"s_add_u32 s17, s17, {PO}")
for i in range(16):
    if i and i % 4 == 0: a("s_add_u32 s17, s17, 4096")
    a(f"buffer_load_dwordx4 v[{32+4*i}:{35+4*i}], v6, s[28:31], s17 offen offset:{(i%4)*1024} sc1", f"g{i}")
a(f"v_mov_b32 v120, s{SB}")
for i in range(1, 16): a(f"v_max_f32 v120, s{SB+4*i}, v120")
for i in range(16): a(f"v_sub_f32 v{96+i}, s{SB+4*i}, v120")
for i in range(16): a(f"v_exp_f32 v{96+i}, v{96+i}")
a(f"v_mul_f32 v121, s{SB+1}, v96")
for i in range(1, 16): a(f"v_fmac_f32 v121, s{SB+1+4*i}, v{96+i}")
a("s_mov_b32 s61, s13")
stamp(7)
a(f"s_lshl_b32 s54, s3, 3\ns_add_u32 s54, s54, {WST}\nv_mov_b32 v16, s54")
setexec(1)
a("ds_write_b64 v16, v[120:121]")
setexec(-1)
for r in range(112, 120): a(f"v_mov_b32 v{r}, 0")
a.wait_vm("wo")
a("s_barrier")
stamp(8)
for s in range(2):
    for cb in range(5):
        for e in range(2):
            for u in range(2):
                rr = 64 + ((cb * 2 + e) * 2 + s) * 4 + 2 * u
                a(f"ds_read_b64_tr_b16 a[{rr}:{rr+1}], v{12+e+2*s} offset:{(4*u*5+cb)*1024}")
for i in range(16):
    a.wait_vm(f"g{i}")
    fp = 96 + (i & ~1)
    sel = "op_sel_hi:[1,0,1]" if i % 2 == 0 else "op_sel:[0,1,0] op_sel_hi:[1,1,1]"
    for k in range(4):
        w = 32 + 4 * i + k; t = 120 + 2 * k
        a(f"v_lshlrev_b32 v{t}, 16, v{w}")
        a(f"v_and_b32 v{t+1}, 0xffff0000, v{w}")
    for k in range(4):
        t = 120 + 2 * k
        a(f"v_pk_fma_f32 v[{112+2*k}:{113+2*k}], v[{t}:{t+1}], v[{fp}:{fp+1}], v[{112+2*k}:{113+2*k}] {sel}")
stamp(9)
a(f"s_lshl_b32 s54, s3, 11\ns_add_u32 s54, s54, {RED}\nv_lshl_add_u32 v16, v0, 5, s54")
a("ds_write_b128 v16, v[112:115]\nds_write_b128 v16, v[116:119] offset:16")
a("s_lshl_b32 s54, s3, 9\nv_lshl_add_u32 v17, v0, 3, s54")
a("v_mov_b32 v18, 0")
a.wait_lg_all()
a("s_barrier")
a(f"ds_read_b128 v[32:35], v18 offset:{WST}", "w")
a(f"ds_read_b128 v[36:39], v18 offset:{WST+16}", "w")
for w in range(4):
    a(f"ds_read_b64 v[{40+2*w}:{41+2*w}], v17 offset:{RED+2048*w}", "r")
a.wait_lg("w")
a("v_max3_f32 v48, v32, v34, v36\nv_max_f32 v48, v48, v38")
for w in range(4): a(f"v_sub_f32 v{32+2*w}, v{32+2*w}, v48")
for w in range(4): a(f"v_exp_f32 v{32+2*w}, v{32+2*w}")
a("v_mul_f32 v49, v32, v33\nv_fmac_f32 v49, v34, v35\nv_fmac_f32 v49, v36, v37\nv_fmac_f32 v49, v38, v39")
a("v_rcp_f32 v49, v49")
a.wait_lg("r")
a("v_pk_mul_f32 v[40:41], v[40:41], v[32:33] op_sel_hi:[1,0]")
for w in range(1, 4):
    a(f"v_pk_fma_f32 v[40:41], v[{40+2*w}:{41+2*w}], v[{32+2*w}:{33+2*w}], v[40:41] op_sel_hi:[1,0,1]")
a("v_mul_f32 v40, v40, v49\nv_mul_f32 v41, v41, v49")
a("v_cvt_pk_bf16_f32 v40, v40, v41")
a("v_lshrrev_b32 v17, 1, v17")
a(f"ds_write_b32 v17, v40 offset:{CL}")
a("v_lshlrev_b32 v18, 4, v2")
a.wait_lg_all()
a("s_barrier")
for s in range(16):
    a(f"ds_read_b128 v[{128+4*s}:{131+4*s}], v18 offset:{CL+64*s}", f"c{s}")
a("s_lshr_b32 s54, s3, 1\ns_lshl_b32 s54, s54, 5\ns_and_b32 s55, s3, 1\ns_lshl_b32 s55, s55, 2\ns_add_u32 s54, s54, s55")
a("v_lshl_add_u32 v19, v8, 3, s54\nv_add_u32 v19, v19, v10\nv_lshlrev_b32 v19, 1, v19")
for s in range(16):
    a.wait_lg(f"c{s}")
    c = "0" if s == 0 else "v[32:35]"
    a(f"v_mfma_f32_16x16x32_bf16 v[32:35], v[{128+4*s}:{131+4*s}], a[{4*s}:{4*s+3}], {c}")
a("v_cvt_pk_bf16_f32 v32, v32, v32")
setexec(0xffff)
a(f"ds_write_b16 v19, v32 offset:{CX}")
setexec(-1)
a.wait_lg_all()
a("s_barrier")
a(f"ds_read_b128 v[36:39], v18 offset:{CX}", "x0")
a(f"ds_read_b128 v[40:43], v18 offset:{CX+64}", "x1")
a("s_lshl_b32 s54, s61, 1\ns_add_u32 s54, s54, s6\ns_mul_i32 s54, s54, 2560\ns_lshl_b32 s55, s3, 7\ns_add_u32 s54, s54, s55")
a(f"s_add_u32 s54, s54, {OP}")
a("v_lshrrev_b32 v19, 5, v0\nv_lshlrev_b32 v19, 9, v19\nv_and_b32 v20, 31, v0\nv_lshl_add_u32 v19, v20, 2, v19")
a("v_and_b32 v20, 1, v2\nv_cmp_eq_u32 s[56:57], 1, v20\nv_cmp_lt_u32 s[58:59], 31, v0")
for s in range(2):
    a.wait_lg(f"x{s}")
    for cb in range(5):
        for e in range(2):
            rr = 64 + ((cb * 2 + e) * 2 + s) * 4
            d = 48 + (cb * 2 + e) * 4
            c = "0" if s == 0 else f"v[{d}:{d+3}]"
            a(f"v_mfma_f32_16x16x32_bf16 v[{d}:{d+3}], v[{36+4*s}:{39+4*s}], a[{rr}:{rr+3}], {c}")
for i in range(3):
    d0 = 48 + (2 * i) * 8; d1 = d0 + 8
    a(f"v_cndmask_b32 v{100+2*i}, v{d0}, v{d0+4}, s[56:57]")
    if i < 2:
        a(f"v_cndmask_b32 v{101+2*i}, v{d1}, v{d1+4}, s[56:57]")
        a(f"v_cndmask_b32 v{100+2*i}, v{100+2*i}, v{101+2*i}, s[58:59]")
    a(f"v_min_u32 v{100+2*i}, -2, v{100+2*i}")
    if i == 2: setexec(0xffffffff)
    a(f"buffer_store_dword v{100+2*i}, v19, s[28:31], s54 offen offset:{1024*i} sc1")
setexec(-1)
stamp(10)

a("L_fin:")
if STAMP:
    a(f"s_cmp_lg_u32 s3, {P['SW']}\ns_cbranch_scc1 L_end")
    a(f"s_mul_i32 s54, s2, {NS*8}\ns_add_u32 s54, s54, {STAMPS}")
    a("v_lshlrev_b32 v7, 3, v0\nv_mov_b32 v252, v250\nv_mov_b32 v253, v251")
    setexec((1<<NS)-1)
    a("buffer_store_dwordx2 v[252:253], v7, s[28:31], s54 offen")
a("L_end:")
a("s_endpgm")
a.raw('''.section .rodata,"a"
.p2align 6
.amdhsa_kernel %s
  .amdhsa_next_free_vgpr 512
  .amdhsa_next_free_sgpr 102
  .amdhsa_accum_offset 256
  .amdhsa_group_segment_fixed_size 0
  .amdhsa_kernarg_size 120
  .amdhsa_user_sgpr_count 2
  .amdhsa_user_sgpr_kernarg_segment_ptr 1
  .amdhsa_system_sgpr_workgroup_id_x 1
.end_amdhsa_kernel''' % NAME)
sys.stdout.write(a.text())
```

```python
import sys, os
sys.path.insert(0, os.path.dirname(__file__))
from asmlib import Asm

NAME = "concat_heads__compressed_kv_cla__compressed_kv_cla__decode_kernel"
P = dict(AMP=-1, AMPK=20, STM=0, STAMP=0, NT=1, NE=4, SPIN=200000, PF=1, SW=0)
for a in sys.argv[1:]:
    k, v = a.split("="); P[k] = int(v)
NT = " nt" if P["NT"] else ""
NE = P["NE"]; SPIN = P["SPIN"]; STAMP = P["STAMP"]

QA, EP, OP, QX, PO, ST, STAMPS = 0x0, 0x10000, 0x18000, 0x80000, 0x100000, 0x500000, 0x800000
NCLR = 16
STS = 16 if P["STM"] == 0 else 128
WSSZ = 0x900000
NS = 16
CKV_STRIDE = 1056
RED = 0; WST = RED + 8192; CL = WST + 64; CX = CL + 1024
QP = CX + 128; QB = QP + 2048; QO = QB + 256
IMG = 12288
assert QO + 256 <= IMG
XB = IMG + 67584
WUV, WO = IMG, IMG + 65536
LDS_BYTES = WO + 81920
assert LDS_BYTES <= 163840
SCALE = (128 ** -0.5) * 1.4426950408889634

import struct
def f2u(x): return struct.unpack("<I", struct.pack("<f", x))[0]

a = Asm()
hdr = open(os.path.join(os.path.dirname(__file__), "header.txt")).read()
a.raw(hdr.rstrip("\n"))
a.raw(f"; @launch grid=(256,1,1) block=(256,1,1) lds={LDS_BYTES}")
a.raw('.amdgcn_target "amdgcn-amd-amdhsa--gfx950"\n.text\n.globl %s\n.p2align 8\n.type %s,@function\n%s:' % (NAME, NAME, NAME))

def setexec(m):
    if m == -1: a("s_mov_b64 exec, -1")
    elif m < 64 or m == 0xffff and False: a(f"s_mov_b64 exec, {m}")
    else:
        a(f"s_mov_b32 exec_lo, 0x{m & 0xffffffff:x}")
        a(f"s_mov_b32 exec_hi, 0x{m >> 32:x}")

def stamp(i):
    if not STAMP: return
    a("s_memrealtime s[96:97]")
    a.wait_lg_all()
    a(f"v_writelane_b32 v250, s96, {i}")
    a(f"v_writelane_b32 v251, s97, {i}")

if STAMP:
    a("s_memrealtime s[98:99]")
a("s_cmp_ge_u32 s2, 256")
a("s_cbranch_scc1 L_end")
a("s_lshr_b32 s5, s2, 3")
a("s_add_u32 s6, s2, s5")
a("s_bfe_u32 s4, s6, 0x10002")
a("s_and_b32 s6, s6, 3")
a("s_mul_i32 s7, s4, 48")
a("s_load_dwordx2 s[12:13], s[0:1], s7 offset:16")
a("s_load_dwordx2 s[8:9], s[0:1], s7 offset:0")
a("s_load_dwordx2 s[16:17], s[0:1], s7 offset:24")
a("s_load_dwordx2 s[28:29], s[0:1], 112")
a("s_load_dwordx2 s[36:37], s[0:1], s7 offset:8")
a("s_load_dwordx2 s[38:39], s[0:1], s7 offset:32")
a("s_load_dwordx2 s[24:25], s[0:1], s7 offset:40")
a("s_load_dwordx2 s[32:33], s[0:1], 96")
a("s_load_dwordx2 s[50:51], s[0:1], 104")
a("v_lshrrev_b32 v4, 6, v0")
a("v_readfirstlane_b32 s3, v4")
a("v_and_b32 v0, 63, v0")
a("v_and_b32 v1, 15, v0")
a("v_lshrrev_b32 v2, 4, v0")
a("s_mov_b32 s10, 1280\ns_mov_b32 s11, 0x20000")
a("s_mov_b32 s14, 5242880\ns_mov_b32 s15, 0x20000")
a("s_mov_b32 s18, 4194304\ns_mov_b32 s19, 0x20000")
a("s_mov_b32 s22, 4194304\ns_mov_b32 s23, 0x20000")
a("s_mov_b32 s26, 5242880\ns_mov_b32 s27, 0x20000")
a(f"s_mov_b32 s30, {WSSZ}\ns_mov_b32 s31, 0x20000")
a("s_mov_b32 s34, 2560\ns_mov_b32 s35, 0x20000")
a("s_mul_i32 s54, s6, 160")
a("s_mul_i32 s55, s3, 40")
a("s_add_u32 s54, s54, s55")
a("s_lshl_b32 s58, s54, 1")
a("s_lshl_b32 s56, s54, 13")
a("s_lshl_b32 s57, s5, 8")
a("s_add_u32 s56, s56, s57")
a("v_mul_u32_u24 v3, 81920, v2")
a("v_lshl_add_u32 v3, v1, 4, v3")
a("v_mul_u32_u24 v4, 20, v2")
a("v_lshlrev_b32 v6, 4, v0")
a("s_lshl_b32 s61, s4, 5")
a("s_add_u32 s61, s61, s5")
a("v_mov_b32 v112, -1\nv_mov_b32 v113, -1\nv_mov_b32 v114, -1\nv_mov_b32 v115, -1")
a("s_waitcnt lgkmcnt(0)")
if STAMP:
    a("v_mov_b32 v250, 0\nv_mov_b32 v251, 0")
    a("v_writelane_b32 v250, s98, 0\nv_writelane_b32 v251, s99, 0")
a(f"s_lshl_b32 s54, s4, 7\ns_add_u32 s54, s54, {EP}")
a("s_load_dwordx2 s[52:53], s[28:29], s54")
a("s_cmp_ge_u32 s6, 2")
a("s_cbranch_scc1 L_notC0")
a("s_lshl_b32 s54, s61, 1\ns_add_u32 s54, s54, s6\ns_mul_i32 s54, s54, 2560")
a("s_mul_i32 s55, s3, 640\ns_add_u32 s54, s54, s55")
a(f"s_add_u32 s54, s54, {OP}")
setexec(0xffffffffff)
a("buffer_store_dwordx4 v[112:115], v6, s[28:31], s54 offen sc1")
setexec(-1)
a("s_mov_b32 s20, s38\ns_mov_b32 s21, s39")
a("s_branch L_clr_done")
a("L_notC0:")
a("s_mov_b32 s20, s36\ns_mov_b32 s21, s37")
a("s_cmp_lg_u32 s6, 2\ns_cbranch_scc1 L_clr_done")
a("s_cmp_ge_u32 s5, 8\ns_cbranch_scc1 L_clr_done")
a("s_lshl_b32 s54, s4, 3\ns_add_u32 s54, s54, s5\ns_lshl_b32 s54, s54, 12")
a("s_lshl_b32 s55, s3, 10\ns_add_u32 s54, s54, s55")
if QA: a(f"s_add_u32 s54, s54, {QA}")
a("buffer_store_dwordx4 v[112:115], v6, s[28:31], s54 offen sc1")
a("buffer_load_dwordx4 v[10:13], v4, s[8:11], s58 offen")
a("buffer_load_dword v14, v4, s[8:11], s58 offen offset:16")
a("s_mov_b32 s59, s56")
for i in range(4):
    a(f"buffer_load_dwordx4 v[{32+4*i}:{35+4*i}], v3, s[12:15], s59 offen{NT}")
    a("s_add_u32 s59, s59, 8192")
a("s_waitcnt vmcnt(6)")
a("s_barrier")
a("s_cmp_lg_u32 s3, 0\ns_cbranch_scc1 L_wq_rest")
a("v_mov_b32 v7, 0\nv_mov_b32 v8, 1")
setexec(1)
a("global_atomic_add v7, v8, s[50:51] sc1")
setexec(-1)
a("s_branch L_wq_rest")
a("L_clr_done:")
a.vm = []
a("buffer_load_dwordx4 v[10:13], v4, s[8:11], s58 offen", "x")
a("buffer_load_dword v14, v4, s[8:11], s58 offen offset:16", "x")
a("s_mov_b32 s59, s56")
for i in range(4):
    a(f"buffer_load_dwordx4 v[{32+4*i}:{35+4*i}], v3, s[12:15], s59 offen{NT}", f"wq{i}")
    a("s_add_u32 s59, s59, 8192")
a("L_wq_rest:")
for i in range(4, 10):
    a(f"buffer_load_dwordx4 v[{32+4*i}:{35+4*i}], v3, s[12:15], s59 offen{NT}", f"wq{i}")
    if i < 9: a("s_add_u32 s59, s59, 8192")
a("v_lshlrev_b32 v5, 14, v1")
a("v_lshl_add_u32 v5, v2, 4, v5")
a("s_lshl_b32 s54, s6, 7\ns_lshl_b32 s55, s3, 5\ns_add_u32 s54, s54, s55\ns_lshl_b32 s54, s54, 13\ns_add_u32 s54, s54, s57")
a("s_add_u32 s55, s54, 8192")
for t in range(2):
    for s in range(4):
        r = 72 + (t * 4 + s) * 4
        a(f"buffer_load_dwordx4 v[{r}:{r+3}], v5, s[16:19], s{54+t} offen offset:{s*64}{NT}", "wuk")
if P["PF"]:
    a("s_getpc_b64 s[62:63]")
    a("L_pc:")
    a("s_lshr_b32 s54, s2, 3\ns_lshl_b32 s54, s54, 2\ns_add_u32 s54, s54, s3\ns_lshl_b32 s54, s54, 7")
    a("s_min_u32 s54, s54, L_end-L_pc-64")
    a("s_load_dword s64, s[62:63], s54 offset:0")
    a("s_load_dword s65, s[62:63], s54 offset:64")
a("s_cmp_ge_u32 s6, 2")
a("s_cbranch_scc1 L_parB")
a(f"s_lshl_b32 s40, s3, 11\ns_add_u32 s40, s40, {WUV}")
a("s_lshl_b32 s41, s3, 17\ns_add_u32 s41, s41, s57")
a("s_lshl_b32 s54, s6, 7\ns_add_u32 s41, s41, s54")
a("s_mov_b32 s42, 1024\ns_mov_b32 s43, 7168\ns_mov_b32 s44, 65536\ns_mov_b32 s45, 458752")
a("v_and_b32 v7, 7, v0\ns_lshl_b32 s54, s3, 1\nv_xor_b32 v7, s54, v7\nv_lshlrev_b32 v7, 4, v7")
a("v_lshrrev_b32 v9, 3, v0\nv_lshl_add_u32 v9, v9, 13, v7")
a("s_branch L_par_done")
a("L_parB:")
a("s_lshl_b32 s46, s5, 1\ns_add_u32 s46, s46, s6\ns_sub_u32 s46, s46, 2")
a(f"s_mul_i32 s40, s3, {16*CKV_STRIDE}\ns_add_u32 s40, s40, {IMG}")
a("s_lshl_b32 s41, s46, 16\ns_lshl_b32 s54, s3, 14\ns_add_u32 s41, s41, s54")
a(f"s_mov_b32 s42, {CKV_STRIDE}\ns_mov_b32 s43, {CKV_STRIDE}\ns_mov_b32 s44, 1024\ns_mov_b32 s45, 1024")
a("v_mov_b32 v9, v6")
a("L_par_done:")
def dma(k):
    a("s_mov_b32 m0, s40")
    a(f"s_add_u32 s40, s40, s{42+(k&1)}")
    a(f"buffer_load_dwordx4 v9, s[20:23], s41 offen{NT} lds", "dmaA")
    a(f"s_add_u32 s41, s41, s{44+(k&1)}")

for r in range(104, 112): a(f"v_mov_b32 v{r}, 0")
a.wait_vm("wq0")
stamp(1)
for t in range(5):
    a(f"v_lshlrev_b32 v{16+2*t}, 16, v{10+t}")
    a(f"v_and_b32 v{17+2*t}, 0xffff0000, v{10+t}")
vm_full = ["wq%d" % i for i in range(10)] + ["wuk"] * 8
for i in range(10):
    n = len(vm_full) - 1 - i
    a(f"s_waitcnt vmcnt({n})")
    xp = 16 + (i & ~1)
    sel = "op_sel_hi:[1,0,1]" if i % 2 == 0 else "op_sel:[0,1,0] op_sel_hi:[1,1,1]"
    for k in range(4):
        w = 32 + 4 * i + k; t = 112 + 2 * k
        a(f"v_lshlrev_b32 v{t}, 16, v{w}")
        a(f"v_and_b32 v{t+1}, 0xffff0000, v{w}")
    for k in range(4):
        t = 112 + 2 * k
        a(f"v_pk_fma_f32 v[{104+2*k}:{105+2*k}], v[{t}:{t+1}], v[{xp}:{xp+1}], v[{104+2*k}:{105+2*k}] {sel}")
a.vm = ["wuk"] * 8
for k in range(NE): dma(k)
for k in range(4):
    a(f"v_permlane32_swap_b32 v{104+2*k}, v{105+2*k}")
for k in range(4):
    a(f"v_add_f32 v{104+2*k}, v{104+2*k}, v{105+2*k}")
a("v_permlane16_swap_b32 v104, v106")
a("v_permlane16_swap_b32 v108, v110")
a("v_and_b32 v7, 1, v2\nv_lshlrev_b32 v7, 1, v7\nv_lshrrev_b32 v8, 1, v2\nv_or_b32 v7, v7, v8")
a("v_lshl_add_u32 v7, v1, 3, v7\nv_lshlrev_b32 v7, 2, v7")
a("s_lshl_b32 s54, s3, 9")
a(f"s_add_u32 s54, s54, {QP}")
a("v_add_u32 v7, s54, v7")
a("v_add_f32 v104, v104, v106")
a("v_add_f32 v108, v108, v110")
a.wait_lg_all()
a("s_add_u32 s52, s52, 1")
a("ds_write_b32 v7, v104")
a("ds_write_b32 v7, v108 offset:16")
a.wait_lg_all()
a("s_barrier")
stamp(2)
a("s_cmp_lg_u32 s3, 0\ns_cbranch_scc1 L_qx_done")
a("v_lshlrev_b32 v7, 3, v0")
for w in range(4):
    a(f"ds_read_b64 v[{112+2*w}:{113+2*w}], v7 offset:{QP+512*w}")
a("v_mov_b32 v122, s52\nv_mov_b32 v123, s53")
a(f"s_lshl_b32 s60, s61, 12\ns_add_u32 s60, s60, {QX}")
a("s_lshl_b32 s54, s6, 10\ns_add_u32 s54, s54, s60")
a.wait_lg_all()
a("v_pk_add_f32 v[112:113], v[112:113], v[114:115]")
a("v_pk_add_f32 v[116:117], v[116:117], v[118:119]")
a("v_pk_add_f32 v[120:121], v[112:113], v[116:117]")
a("buffer_store_dwordx4 v[120:123], v6, s[28:31], s54 offen sc1")
stamp(3)
a("s_mov_b32 s55, 0")
a("v_mov_b32 v8, 0")
a("L_qs:")
for jj in range(4):
    a(f"s_load_dwordx2 s[{64+2*jj}:{65+2*jj}], s[28:29], s60 offset:{jj*1024+1016} glc")
a("s_add_u32 s55, s55, 1")
a("s_waitcnt lgkmcnt(0)")
for jj in range(4): a(f"s_xor_b64 s[{64+2*jj}:{65+2*jj}], s[{64+2*jj}:{65+2*jj}], s[52:53]")
a("s_or_b64 s[64:65], s[64:65], s[66:67]\ns_or_b64 s[68:69], s[68:69], s[70:71]")
a(f"s_cmp_ge_u32 s55, {SPIN}\ns_cbranch_scc1 L_qg")
a("s_or_b64 s[64:65], s[64:65], s[68:69]\ns_cbranch_scc1 L_qs")
a("L_qg:")
for jj in range(4):
    a(f"buffer_load_dwordx4 v[{124+4*jj}:{127+4*jj}], v6, s[28:31], s60 offen offset:{1024*jj} sc1")
a("global_load_dword v140, v8, s[50:51] sc1")
a("s_add_u32 s55, s55, 1")
a("s_waitcnt vmcnt(0)")
a(f"v_min_u32 v140, {NCLR}, v140\nv_xor_b32 v140, {NCLR}, v140")
for jj in range(4):
    a(f"v_xor_b32 v{126+4*jj}, s52, v{126+4*jj}\nv_xor_b32 v{127+4*jj}, s53, v{127+4*jj}")
    a(f"v_or3_b32 v140, v140, v{126+4*jj}, v{127+4*jj}")
a("v_cmp_ne_u32 vcc, 0, v140")
a(f"s_cmp_ge_u32 s55, {SPIN}\ns_cbranch_scc1 L_qg_ok")
a("s_cbranch_vccnz L_qg")
a("L_qg_ok:")
a("v_pk_add_f32 v[124:125], v[124:125], v[128:129]")
a("v_pk_add_f32 v[132:133], v[132:133], v[136:137]")
a("v_pk_add_f32 v[124:125], v[124:125], v[132:133]")
a("v_lshlrev_b32 v7, 2, v0")
a("v_cvt_pk_bf16_f32 v124, v124, v125")
a(f"ds_write_b32 v7, v124 offset:{QB}")
a.wait_lg_all()
a("L_qx_done:")
a("s_barrier")
stamp(4)
a("v_lshlrev_b32 v7, 4, v2")
for s in range(4):
    a(f"ds_read_b128 v[{120+4*s}:{123+4*s}], v7 offset:{QB+64*s}", f"q{s}")
a(f"s_waitcnt vmcnt({NE})")
a.vm = ["dmaA"] * NE
for s in range(4):
    a.wait_lg(f"q{s}")
    for t in range(2):
        r = 72 + (t * 4 + s) * 4
        c = "0" if s == 0 else f"v[{136+4*t}:{139+4*t}]"
        a(f"v_mfma_f32_16x16x32_bf16 v[{136+4*t}:{139+4*t}], v[{120+4*s}:{123+4*s}], v[{r}:{r+3}], {c}")
a(f"s_mov_b32 s54, 0x{f2u(SCALE):08x}")
a("s_lshl_b32 s55, s3, 6")
a("v_lshl_add_u32 v7, v1, 2, s55")
a("v_mul_f32 v136, s54, v136")
a("v_mul_f32 v140, s54, v140")
a("v_cvt_pk_bf16_f32 v136, v136, v140")
a("v_min_u32 v136, -2, v136")
setexec(0xffff)
a(f"ds_write_b32 v7, v136 offset:{QO}")
setexec(-1)
a.wait_lg_all()
a("s_barrier")
a("s_cmp_lg_u32 s3, 0\ns_cbranch_scc1 L_qa_done")
setexec(0xffff)
a(f"ds_read_b128 v[112:115], v6 offset:{QO}")
a("s_lshl_b32 s54, s61, 10\ns_lshl_b32 s55, s6, 8\ns_add_u32 s54, s54, s55")
if QA: a(f"s_add_u32 s54, s54, {QA}")
a.wait_lg_all()
vm_save = list(a.vm)
a("buffer_store_dwordx4 v[112:115], v6, s[28:31], s54 offen sc1")
setexec(-1)
a.vm = vm_save
a("L_qa_done:")
a("s_barrier")
stamp(5)
for k in range(NE, 16): dma(k)
a("s_cmp_lt_u32 s6, 2\ns_cbranch_scc1 L_roleC")

a("s_and_b32 s47, s3, 1\ns_lshr_b32 s48, s3, 1")
a("v_lshlrev_b32 v5, 10, v1\nv_lshl_add_u32 v5, v2, 4, v5")
a("s_lshl_b32 s54, s4, 15\ns_lshl_b32 s55, s47, 14\ns_add_u32 s54, s54, s55\ns_lshl_b32 s49, s48, 9\ns_add_u32 s54, s54, s49")
a(f"s_add_u32 s60, s54, {QA}")
def qloads():
    for s in range(8):
        a(f"buffer_load_dwordx4 v[{32+4*s}:{35+4*s}], v5, s[28:31], s60 offen offset:{64*s} sc1", "qa")
qloads()
a(f"s_add_u32 s54, s49, {IMG}")
a(f"v_mul_u32_u24 v7, {CKV_STRIDE}, v1\nv_lshl_add_u32 v7, v2, 4, v7\nv_add_u32 v7, s54, v7")
a(f"v_lshrrev_b32 v8, 2, v0\nv_mul_u32_u24 v8, {CKV_STRIDE}, v8\nv_and_b32 v10, 3, v0\nv_lshl_add_u32 v8, v10, 3, v8\nv_add_u32 v8, s54, v8")
a(f"s_lshl_b32 s54, s3, 12\ns_add_u32 s54, s54, {XB}\nv_add_u32 v11, s54, v6")
a(f"s_xor_b32 s54, s3, 2\ns_lshl_b32 s54, s54, 12\ns_add_u32 s54, s54, {XB}\nv_add_u32 v12, s54, v6")
a("s_waitcnt vmcnt(8)")
a("s_barrier")
stamp(6)
for s in range(8):
    for t in range(4):
        r = (t * 8 + s) * 4
        a(f"ds_read_b128 a[{r}:{r+3}], v7 offset:{t*16*CKV_STRIDE + s*64}", f"S{s}_{t}")
a("s_mov_b32 s55, 0")
a("L_qa_chk:")
a("s_waitcnt vmcnt(0)")
a("v_max3_u32 v10, v32, v33, v34")
for r in range(35, 63, 2):
    a(f"v_max3_u32 v10, v10, v{r}, v{r+1}")
a("v_max_u32 v10, v10, v63")
a("v_cmp_eq_u32 vcc, -1, v10")
a("s_cbranch_vccz L_qa_ok")
a("s_add_u32 s55, s55, 1")
a(f"s_cmp_ge_u32 s55, {SPIN}\ns_cbranch_scc1 L_qa_ok")
qloads()
a("s_branch L_qa_chk")
a("L_qa_ok:")
a.vm = []
stamp(7)
pv = [(T, s2, u) for s2 in range(2) for T in range(16) for u in range(2)]
pvi = 0
for s in range(8):
    for t in range(4):
        r = (t * 8 + s) * 4
        a.wait_lg(f"S{s}_{t}")
        c = "0" if s == 0 else f"v[{64+4*t}:{67+4*t}]"
        a(f"v_mfma_f32_16x16x32_bf16 v[{64+4*t}:{67+4*t}], a[{r}:{r+3}], v[{32+4*s}:{35+4*s}], {c}")
        for _ in range(2):
            T, s2, u = pv[pvi]; pvi += 1
            rr = 128 + (T * 2 + s2) * 4 + 2 * u
            a(f"ds_read_b64_tr_b16 a[{rr}:{rr+1}], v8 offset:{(32*s2+16*u)*CKV_STRIDE + T*32}", "pv")
for t in range(4):
    a(f"ds_write_b128 v11, v[{64+4*t}:{67+4*t}] offset:{t*1024}")
a.wait_lg_all()
a("s_barrier")
for t in range(4):
    a(f"ds_read_b128 v[{80+4*t}:{83+4*t}], v12 offset:{t*1024}", f"x{t}")
for t in range(4):
    a.wait_lg(f"x{t}")
    for k in range(0, 4, 2):
        a(f"v_pk_add_f32 v[{64+4*t+k}:{65+4*t+k}], v[{64+4*t+k}:{65+4*t+k}], v[{80+4*t+k}:{81+4*t+k}]")
a("v_max3_f32 v104, v64, v65, v66\nv_max3_f32 v105, v67, v68, v69\nv_max3_f32 v106, v70, v71, v72\nv_max3_f32 v107, v73, v74, v75")
a("v_max3_f32 v104, v104, v76, v77\nv_max3_f32 v105, v105, v78, v79\nv_max3_f32 v104, v104, v106, v107\nv_max_f32 v104, v104, v105")
a("v_mov_b32 v105, v104\nv_permlane32_swap_b32 v104, v105\nv_max_f32 v104, v104, v105")
a("v_mov_b32 v105, v104\nv_permlane16_swap_b32 v104, v105\nv_max_f32 v104, v104, v105")
for r in range(64, 80): a(f"v_sub_f32 v{r}, v{r}, v104")
for r in range(64, 80): a(f"v_exp_f32 v{r}, v{r}")
for k in range(8):
    a(f"v_cvt_pk_bf16_f32 v{96+k}, v{64+2*k}, v{65+2*k}")
a.wait_lg_all()
sums = []
for k in range(4): sums.append(f"v_pk_add_f32 v[{64+4*k}:{65+4*k}], v[{64+4*k}:{65+4*k}], v[{66+4*k}:{67+4*k}]")
sums += ["v_pk_add_f32 v[64:65], v[64:65], v[68:69]", "v_pk_add_f32 v[72:73], v[72:73], v[76:77]", "v_pk_add_f32 v[64:65], v[64:65], v[72:73]",
         "v_add_f32 v105, v64, v65", "v_mov_b32 v106, v105", "s_nop 0", "v_permlane32_swap_b32 v105, v106", "v_add_f32 v105, v105, v106",
         "v_mov_b32 v106, v105", "s_nop 0", "v_permlane16_swap_b32 v105, v106", "v_add_f32 v105, v105, v106",
         "v_mov_b32 v106, s52", "v_mov_b32 v107, s53", f"v_mul_u32_u24 v14, {64*STS}, v1"]
sums += ["v_lshlrev_b32 v13, 18, v2", "v_lshl_add_u32 v13, v1, 4, v13"]
a("s_lshl_b32 s54, s4, 5\ns_lshl_b32 s55, s47, 4\ns_add_u32 s54, s54, s55\ns_lshl_b32 s54, s54, 6\ns_add_u32 s54, s54, s46\ns_lshl_b32 s54, s54, 10\ns_add_u32 s54, s54, s49")
a(f"s_add_u32 s64, s54, {PO}\ns_add_u32 s65, s64, 65536\ns_add_u32 s66, s65, 65536\ns_add_u32 s67, s66, 65536")
a(f"s_lshl_b32 s54, s4, 5\ns_add_u32 s54, s54, s55\ns_lshl_b32 s54, s54, 6\ns_add_u32 s54, s54, s46\ns_mul_i32 s54, s54, {STS}\ns_add_u32 s68, s54, {ST}")
def pack_store(Q):
    L = []
    for r in range(4):
        d = 192 + (Q * 4 + r) * 4
        for k in range(4):
            T = 8 * Q + 2 * k
            L.append(f"v_cvt_pk_bf16_f32 v{d+k}, v{128+4*T+r}, v{128+4*(T+1)+r}")
        L.append(f"buffer_store_dwordx4 v[{d}:{d+3}], v13, s[28:31], s{64+r} offen offset:{Q*256} sc1")
    return L
fill = list(sums)
for T in range(16):
    for s2 in range(2):
        rr = 128 + (T * 2 + s2) * 4
        c = "0" if s2 == 0 else f"v[{128+4*T}:{131+4*T}]"
        a(f"v_mfma_f32_16x16x32_bf16 v[{128+4*T}:{131+4*T}], v[{96+4*s2}:{99+4*s2}], a[{rr}:{rr+3}], {c}")
        if T == 10 and s2 == 0: fill += pack_store(0)
        for _ in range(2):
            if fill: a(fill.pop(0))
for x in fill: a(x)
for x in pack_store(1): a(x)
stamp(8)
a.wait_vm_all()
a("s_barrier")
a("s_cmp_lg_u32 s48, 0\ns_cbranch_scc1 L_b_done")
setexec(0xffff)
a("buffer_store_dwordx4 v[104:107], v14, s[28:31], s68 offen sc1")
setexec(-1)
a("L_b_done:")
stamp(9)
a("s_cmp_lg_u32 s3, 0\ns_cbranch_scc1 L_fin")
a("s_cmp_ge_u32 s46, 20\ns_cbranch_scc1 L_fin")
a("v_lshrrev_b32 v7, 3, v0\nv_mul_u32_u24 v7, 2560, v7\nv_and_b32 v8, 7, v0\nv_lshl_add_u32 v7, v8, 4, v7")
a("s_mul_i32 s54, s4, 163840\ns_lshl_b32 s55, s46, 7\ns_add_u32 s54, s54, s55")
a(f"s_add_u32 s64, s54, {OP}")
for i in range(1, 8): a(f"s_add_u32 s{64+i}, s{63+i}, 20480")
a("s_mov_b32 s55, 0")
a("L_d_poll:")
for i in range(8):
    a(f"buffer_load_dwordx4 v[{32+4*i}:{35+4*i}], v7, s[28:31], s{64+i} offen sc1")
a("s_add_u32 s55, s55, 1")
a("s_waitcnt vmcnt(0)")
a("v_max3_u32 v10, v32, v33, v34")
for r in range(35, 63, 2):
    a(f"v_max3_u32 v10, v10, v{r}, v{r+1}")
a("v_max_u32 v10, v10, v63")
a("v_cmp_eq_u32 vcc, -1, v10")
a(f"s_cmp_ge_u32 s55, {SPIN}\ns_cbranch_scc1 L_d_ok")
a("s_cbranch_vccnz L_d_poll")
a("L_d_ok:")
for st, rng in ((16, range(32, 48, 2)), (8, range(32, 40, 2)), (4, range(32, 36, 2))):
    for r in rng:
        a(f"v_pk_add_f32 v[{r}:{r+1}], v[{r}:{r+1}], v[{r+st}:{r+st+1}]")
for k in range(4):
    a(f"v_add_f32_dpp v{36+k}, v{32+k}, v{32+k} row_ror:8 row_mask:0xf bank_mask:0xf")
for k in range(4): a(f"v_mov_b32 v{40+k}, v{36+k}")
for k in range(4): a(f"v_permlane16_swap_b32 v{36+k}, v{40+k}")
for k in range(4): a(f"v_add_f32 v{36+k}, v{36+k}, v{40+k}")
for k in range(4): a(f"v_mov_b32 v{40+k}, v{36+k}")
for k in range(4): a(f"v_permlane32_swap_b32 v{36+k}, v{40+k}")
for k in range(4): a(f"v_add_f32 v{36+k}, v{36+k}, v{40+k}")
a("v_cvt_pk_bf16_f32 v36, v36, v37\nv_cvt_pk_bf16_f32 v37, v38, v39")
a("s_mul_i32 s54, s4, 1280\ns_lshl_b32 s55, s46, 6\ns_add_u32 s54, s54, s55")
a("v_lshlrev_b32 v7, 3, v0")
setexec(0xff)
a("buffer_store_dwordx2 v[36:37], v7, s[32:35], s54 offen")
a("s_cmp_lg_u32 s46, 0\ns_cbranch_scc1 L_noep")
a(f"s_lshl_b32 s54, s4, 7\ns_add_u32 s54, s54, {EP}")
setexec(1)
a("buffer_store_dwordx2 v[106:107], v7, s[28:31], s54 offen sc1")
a("L_noep:")
setexec(-1)
stamp(10)
a("s_branch L_fin")

a("L_roleC:")
a.vm = ["dmaA"] * 16; a.lg = []
a("s_and_b32 s54, s3, 1\ns_lshl_b32 s54, s54, 3")
a("v_lshl_add_u32 v7, v2, 1, s54\nv_xor_b32 v7, v7, v1\nv_lshlrev_b32 v7, 4, v7")
a("v_mul_u32_u24 v8, 1280, v2\nv_add_u32 v7, v7, v8")
a("s_lshl_b32 s54, s5, 7\ns_lshl_b32 s55, s6, 6\ns_add_u32 s54, s54, s55\ns_lshl_b32 s55, s3, 2\ns_add_u32 s54, s54, s55\ns_mul_i32 s41, s54, 1280")
a(f"s_mul_i32 s40, s3, 5120\ns_add_u32 s40, s40, {WO}")
for aa in range(4):
    for cb in range(5):
        a("s_mov_b32 m0, s40")
        a(f"s_add_u32 s40, s40, {1024 if cb < 4 else 1024 + 15*1024}")
        a(f"buffer_load_dwordx4 v7, s[24:27], s41 offen{NT} lds", "wo")
        a(f"s_add_u32 s41, s41, {256 if cb < 4 else 16*1280 - 1024}")
a("v_lshrrev_b32 v8, 2, v1\nv_and_b32 v10, 3, v0")
a("v_lshrrev_b32 v11, 1, v10\ns_lshl_b32 s54, s3, 1\nv_add_u32 v11, s54, v11\nv_lshlrev_b32 v12, 1, v8\nv_xor_b32 v11, v11, v12\nv_lshlrev_b32 v11, 4, v11")
a("v_and_b32 v12, 1, v10\nv_lshl_add_u32 v11, v12, 3, v11")
a(f"v_lshl_add_u32 v11, v8, 11, v11\nv_lshl_add_u32 v11, v2, 7, v11\nv_add_u32 v11, {WUV}, v11")
a("v_and_b32 v13, 1, v2\nv_lshlrev_b32 v13, 3, v13\nv_lshl_add_u32 v13, v8, 1, v13")
a("v_lshrrev_b32 v14, 1, v10\ns_lshl_b32 s54, s3, 2\nv_add_u32 v14, s54, v14")
a("v_xor_b32 v15, v14, v13\nv_add_u32 v14, 2, v14\nv_xor_b32 v14, v14, v13")
a(f"v_mul_u32_u24 v16, 5120, v2\nv_lshl_add_u32 v16, v8, 8, v16\nv_lshl_add_u32 v16, v12, 3, v16\nv_add_u32 v16, {WO}, v16")
a("v_lshl_add_u32 v12, v15, 4, v16\nv_lshl_add_u32 v13, v14, 4, v16")
a("v_add_u32 v14, 40960, v12\nv_add_u32 v15, 40960, v13")
a.wait_vm("dmaA")
a("s_barrier")
stamp(6)
for s in range(16):
    for u in range(2):
        off = (128 * (s >> 2) + 64 * u + ((4 * s) & 15)) * 128
        a(f"ds_read_b64_tr_b16 a[{4*s+2*u}:{4*s+2*u+1}], v11 offset:{off}")
a(f"s_lshl_b32 s54, s61, 6\ns_lshl_b32 s55, s3, 4\ns_add_u32 s54, s54, s55\ns_mul_i32 s54, s54, {STS}")
a(f"s_add_u32 s60, s54, {ST}")
a("s_mov_b32 s55, 0")
SB = 36
a("s_mov_b32 s8, s52\ns_mov_b32 s9, s53\ns_mov_b32 s12, s60\ns_mov_b32 s13, s61\ns_mov_b32 s16, 0")
a("L_st:")
if STS == 16:
    for i in range(4):
        a(f"s_load_dwordx16 s[{SB+16*i}:{SB+16*i+15}], s[28:29], s12 offset:{64*i} glc")
else:
    for i in range(16):
        a(f"s_load_dwordx4 s[{SB+4*i}:{SB+4*i+3}], s[28:29], s12 offset:{STS*i} glc")
a("s_add_u32 s16, s16, 1")
a.wait_lg_all()
for i in range(16):
    r = SB + 4 * i + 2
    a(f"s_xor_b64 s[{r}:{r+1}], s[{r}:{r+1}], s[8:9]")
    if i: a(f"s_or_b64 s[{SB+2}:{SB+3}], s[{SB+2}:{SB+3}], s[{r}:{r+1}]")
a(f"s_cmp_ge_u32 s16, {SPIN}\ns_cbranch_scc1 L_st_ok")
a(f"s_cmp_lg_u64 s[{SB+2}:{SB+3}], 0\ns_cbranch_scc1 L_st")
a("L_st_ok:")
a("s_lshl_b32 s17, s13, 6\ns_lshl_b32 s16, s3, 4\ns_add_u32 s17, s17, s16\ns_lshl_b32 s17, s17, 10")
a(f"s_add_u32 s17, s17, {PO}")
for i in range(16):
    if i and i % 4 == 0: a("s_add_u32 s17, s17, 4096")
    a(f"buffer_load_dwordx4 v[{32+4*i}:{35+4*i}], v6, s[28:31], s17 offen offset:{(i%4)*1024} sc1", f"g{i}")
a(f"v_mov_b32 v120, s{SB}")
for i in range(1, 16): a(f"v_max_f32 v120, s{SB+4*i}, v120")
for i in range(16): a(f"v_sub_f32 v{96+i}, s{SB+4*i}, v120")
for i in range(16): a(f"v_exp_f32 v{96+i}, v{96+i}")
a(f"v_mul_f32 v121, s{SB+1}, v96")
for i in range(1, 16): a(f"v_fmac_f32 v121, s{SB+1+4*i}, v{96+i}")
a("s_mov_b32 s61, s13")
stamp(7)
a(f"s_lshl_b32 s54, s3, 3\ns_add_u32 s54, s54, {WST}\nv_mov_b32 v16, s54")
setexec(1)
a("ds_write_b64 v16, v[120:121]")
setexec(-1)
for r in range(112, 120): a(f"v_mov_b32 v{r}, 0")
a.wait_vm("wo")
a("s_barrier")
stamp(8)
for s in range(2):
    for cb in range(5):
        for e in range(2):
            for u in range(2):
                rr = 64 + ((cb * 2 + e) * 2 + s) * 4 + 2 * u
                a(f"ds_read_b64_tr_b16 a[{rr}:{rr+1}], v{12+e+2*s} offset:{(4*u*5+cb)*1024}")
for i in range(16):
    a.wait_vm(f"g{i}")
    fp = 96 + (i & ~1)
    sel = "op_sel_hi:[1,0,1]" if i % 2 == 0 else "op_sel:[0,1,0] op_sel_hi:[1,1,1]"
    for k in range(4):
        w = 32 + 4 * i + k; t = 120 + 2 * k
        a(f"v_lshlrev_b32 v{t}, 16, v{w}")
        a(f"v_and_b32 v{t+1}, 0xffff0000, v{w}")
    for k in range(4):
        t = 120 + 2 * k
        a(f"v_pk_fma_f32 v[{112+2*k}:{113+2*k}], v[{t}:{t+1}], v[{fp}:{fp+1}], v[{112+2*k}:{113+2*k}] {sel}")
stamp(9)
a(f"s_lshl_b32 s54, s3, 11\ns_add_u32 s54, s54, {RED}\nv_lshl_add_u32 v16, v0, 5, s54")
a("ds_write_b128 v16, v[112:115]\nds_write_b128 v16, v[116:119] offset:16")
a("s_lshl_b32 s54, s3, 9\nv_lshl_add_u32 v17, v0, 3, s54")
a("v_mov_b32 v18, 0")
a.wait_lg_all()
a("s_barrier")
a(f"ds_read_b128 v[32:35], v18 offset:{WST}", "w")
a(f"ds_read_b128 v[36:39], v18 offset:{WST+16}", "w")
for w in range(4):
    a(f"ds_read_b64 v[{40+2*w}:{41+2*w}], v17 offset:{RED+2048*w}", "r")
a.wait_lg("w")
a("v_max3_f32 v48, v32, v34, v36\nv_max_f32 v48, v48, v38")
for w in range(4): a(f"v_sub_f32 v{32+2*w}, v{32+2*w}, v48")
for w in range(4): a(f"v_exp_f32 v{32+2*w}, v{32+2*w}")
a("v_mul_f32 v49, v32, v33\nv_fmac_f32 v49, v34, v35\nv_fmac_f32 v49, v36, v37\nv_fmac_f32 v49, v38, v39")
a("v_rcp_f32 v49, v49")
a.wait_lg("r")
a("v_pk_mul_f32 v[40:41], v[40:41], v[32:33] op_sel_hi:[1,0]")
for w in range(1, 4):
    a(f"v_pk_fma_f32 v[40:41], v[{40+2*w}:{41+2*w}], v[{32+2*w}:{33+2*w}], v[40:41] op_sel_hi:[1,0,1]")
a("v_mul_f32 v40, v40, v49\nv_mul_f32 v41, v41, v49")
a("v_cvt_pk_bf16_f32 v40, v40, v41")
a("v_lshrrev_b32 v17, 1, v17")
a(f"ds_write_b32 v17, v40 offset:{CL}")
a("v_lshlrev_b32 v18, 4, v2")
a.wait_lg_all()
a("s_barrier")
for s in range(16):
    a(f"ds_read_b128 v[{128+4*s}:{131+4*s}], v18 offset:{CL+64*s}", f"c{s}")
a("s_lshr_b32 s54, s3, 1\ns_lshl_b32 s54, s54, 5\ns_and_b32 s55, s3, 1\ns_lshl_b32 s55, s55, 2\ns_add_u32 s54, s54, s55")
a("v_lshl_add_u32 v19, v8, 3, s54\nv_add_u32 v19, v19, v10\nv_lshlrev_b32 v19, 1, v19")
for s in range(16):
    a.wait_lg(f"c{s}")
    c = "0" if s == 0 else "v[32:35]"
    a(f"v_mfma_f32_16x16x32_bf16 v[32:35], v[{128+4*s}:{131+4*s}], a[{4*s}:{4*s+3}], {c}")
a("v_cvt_pk_bf16_f32 v32, v32, v32")
setexec(0xffff)
a(f"ds_write_b16 v19, v32 offset:{CX}")
setexec(-1)
a.wait_lg_all()
a("s_barrier")
a(f"ds_read_b128 v[36:39], v18 offset:{CX}", "x0")
a(f"ds_read_b128 v[40:43], v18 offset:{CX+64}", "x1")
a("s_lshl_b32 s54, s61, 1\ns_add_u32 s54, s54, s6\ns_mul_i32 s54, s54, 2560\ns_lshl_b32 s55, s3, 7\ns_add_u32 s54, s54, s55")
a(f"s_add_u32 s54, s54, {OP}")
a("v_lshrrev_b32 v19, 5, v0\nv_lshlrev_b32 v19, 9, v19\nv_and_b32 v20, 31, v0\nv_lshl_add_u32 v19, v20, 2, v19")
a("v_and_b32 v20, 1, v2\nv_cmp_eq_u32 s[56:57], 1, v20\nv_cmp_lt_u32 s[58:59], 31, v0")
for s in range(2):
    a.wait_lg(f"x{s}")
    for cb in range(5):
        for e in range(2):
            rr = 64 + ((cb * 2 + e) * 2 + s) * 4
            d = 48 + (cb * 2 + e) * 4
            c = "0" if s == 0 else f"v[{d}:{d+3}]"
            a(f"v_mfma_f32_16x16x32_bf16 v[{d}:{d+3}], v[{36+4*s}:{39+4*s}], a[{rr}:{rr+3}], {c}")
for i in range(3):
    d0 = 48 + (2 * i) * 8; d1 = d0 + 8
    a(f"v_cndmask_b32 v{100+2*i}, v{d0}, v{d0+4}, s[56:57]")
    if i < 2:
        a(f"v_cndmask_b32 v{101+2*i}, v{d1}, v{d1+4}, s[56:57]")
        a(f"v_cndmask_b32 v{100+2*i}, v{100+2*i}, v{101+2*i}, s[58:59]")
    a(f"v_min_u32 v{100+2*i}, -2, v{100+2*i}")
    if i == 2: setexec(0xffffffff)
    a(f"buffer_store_dword v{100+2*i}, v19, s[28:31], s54 offen offset:{1024*i} sc1")
setexec(-1)
stamp(10)

a("L_fin:")
if STAMP:
    a(f"s_cmp_lg_u32 s3, {P['SW']}\ns_cbranch_scc1 L_end")
    a(f"s_mul_i32 s54, s2, {NS*8}\ns_add_u32 s54, s54, {STAMPS}")
    a("v_lshlrev_b32 v7, 3, v0\nv_mov_b32 v252, v250\nv_mov_b32 v253, v251")
    setexec((1<<NS)-1)
    a("buffer_store_dwordx2 v[252:253], v7, s[28:31], s54 offen")
    if P["AMP"] >= 0:
        a(f"v_readlane_b32 s54, v250, {P['AMP']}\nv_readlane_b32 s55, v250, 0")
        a("s_nop 3\ns_sub_u32 s54, s54, s55")
        a("s_cmp_gt_u32 s54, 10000\ns_cbranch_scc1 L_end")
        a(f"s_mul_i32 s54, s54, {P['AMPK']}")
        a("s_memrealtime s[96:97]\ns_waitcnt lgkmcnt(0)\ns_add_u32 s54, s54, s96")
        a("L_amp:\ns_memrealtime s[96:97]\ns_waitcnt lgkmcnt(0)\ns_sub_u32 s55, s96, s54\ns_cmp_lt_i32 s55, 0\ns_cbranch_scc1 L_amp")
a("L_end:")
a("s_endpgm")
a.raw('''.section .rodata,"a"
.p2align 6
.amdhsa_kernel %s
  .amdhsa_next_free_vgpr 512
  .amdhsa_next_free_sgpr 102
  .amdhsa_accum_offset 256
  .amdhsa_group_segment_fixed_size 0
  .amdhsa_kernarg_size 120
  .amdhsa_user_sgpr_count 2
  .amdhsa_user_sgpr_kernarg_segment_ptr 1
  .amdhsa_system_sgpr_workgroup_id_x 1
.end_amdhsa_kernel''' % NAME)
sys.stdout.write(a.text())
```

```python
import sys, os, struct
sys.path.insert(0, os.path.dirname(__file__))
from asmlib import Asm

NAME = "concat_heads__compressed_kv_cla__compressed_kv_cla__decode_kernel"
P = dict(STAMP=0, FINE=0, AMP=-1, AMPK=20, NT=1, SPIN=200000, PF=1, SW=0,
         D1=7, NE=4, DC0=3, NC0=8, DC1=10, DC2=14, SLP=0, MASK=1, STV=0)
for x in sys.argv[1:]:
    k, v = x.split("="); P[k] = int(v)
NT = " nt" if P["NT"] else ""
SPIN = P["SPIN"]; STAMP = P["STAMP"]

QA, EP, OP, QX, PO, ST, STAMPS = 0x0, 0x10000, 0x18000, 0x80000, 0x100000, 0x500000, 0x800000
WSSZ = 0x900000
NCLR = 16
NS = 16
QP = 0; QB = QP + 2048; QO = QB + 256; SL = QO + 512; FB = SL + 512; R3 = FB + 512; CX = R3 + 1024
IMG = 5376
assert CX + 512 <= IMG and IMG % 256 == 0
ROW = 1056
XB = IMG + 64 * ROW
WUV = IMG; GAT = IMG; WO = IMG + 64 * ROW
LDS_BYTES = WO + 81920
WUK = WO + 16384
assert LDS_BYTES <= 163840
SCALE = (128 ** -0.5) * 1.4426950408889634
def f2u(x): return struct.unpack("<I", struct.pack("<f", x))[0]

a = Asm()
a.raw(open(os.path.join(os.path.dirname(__file__), "header.txt")).read().rstrip("\n"))
a.raw(f"; @launch grid=(256,1,1) block=(256,1,1) lds={LDS_BYTES}")
a.raw('.amdgcn_target "amdgcn-amd-amdhsa--gfx950"\n.text\n.globl %s\n.p2align 8\n.type %s,@function\n%s:' % (NAME, NAME, NAME))

def setexec(m):
    if m == -1: a("s_mov_b64 exec, -1")
    elif m < 64: a(f"s_mov_b64 exec, {m}")
    else:
        a(f"s_mov_b32 exec_lo, 0x{m & 0xffffffff:x}")
        a(f"s_mov_b32 exec_hi, 0x{m >> 32:x}")
FS0 = 70
fs_used = {}
def fs(role, name):
    if not P["FINE"]: return
    L = fs_used.setdefault(role, [])
    r = FS0 + 2 * len(L); assert r <= 98
    L.append(name)
    a(f"s_memtime s[{r}:{r+1}]")
def fs_flush(role):
    if not P["FINE"]: return
    a("s_waitcnt lgkmcnt(0)")
    for k, nm in enumerate(fs_used[role]):
        a(f"s_sub_u32 s{FS0+2*k+1}, s{FS0+2*k}, s{FS0}")
    a("v_mov_b32 v250, 0\nv_mov_b32 v251, 0")
    for k, nm in enumerate(fs_used[role]):
        a(f"s_mul_i32 s{FS0+2*k+1}, s{FS0+2*k+1}, 100")
        a(f"v_writelane_b32 v250, s{FS0+2*k+1}, {k}")
    sys.stderr.write(role + ": " + " ".join(f"{k}={nm}" for k, nm in enumerate(fs_used[role])) + "\n")
pend = []
def stamp(i):
    if not STAMP or P["FINE"]: return
    r = 72 + 2 * len(pend); assert r <= 98
    pend.append(i)
    a(f"s_memrealtime s[{r}:{r+1}]")
def stamp_flush():
    if not STAMP or P["FINE"]: return
    a.wait_lg_all()
    for k, i in enumerate(pend):
        a(f"v_writelane_b32 v250, s{72+2*k}, {i}")
        a(f"v_writelane_b32 v251, s{73+2*k}, {i}")
    pend.clear()
def xlane_reduce(op, r, t):
    return [f"v_mov_b32 v{t}, v{r}", f"v_permlane32_swap_b32 v{r}, v{t}", f"{op} v{r}, v{r}, v{t}",
            f"v_mov_b32 v{t}, v{r}", f"v_permlane16_swap_b32 v{r}, v{t}", f"{op} v{r}, v{r}, v{t}"]
def throttle(D):
    if len(a.vm) >= D:
        n = D - 1
        a(f"s_waitcnt vmcnt({n})")
        a.vm = a.vm[len(a.vm) - n:] if n else []
def sentinel_max(lo, dst, tmp):
    a(f"v_max3_u32 v{dst}, v{lo}, v{lo+1}, v{lo+2}\nv_max3_u32 v{tmp}, v{lo+3}, v{lo+4}, v{lo+5}")
    for r in range(lo + 6, lo + 30, 4):
        a(f"v_max3_u32 v{dst}, v{dst}, v{r}, v{r+1}\nv_max3_u32 v{tmp}, v{tmp}, v{r+2}, v{r+3}")
    a(f"v_max3_u32 v{dst}, v{dst}, v{lo+30}, v{lo+31}\nv_max_u32 v{dst}, v{dst}, v{tmp}")

if STAMP: a("s_memrealtime s[100:101]")
a("s_lshr_b32 s5, s2, 3")
a("s_add_u32 s6, s2, s5")
a("s_bfe_u32 s4, s6, 0x10002")
a("s_mul_i32 s7, s4, 48")
a("s_load_dwordx8 s[36:43], s[0:1], s7 offset:0")
a("s_cmp_ge_u32 s2, 256")
a("s_cbranch_scc1 L_end")
a("v_lshrrev_b32 v4, 6, v0")
a("s_and_b32 s6, s6, 3")
a("v_readfirstlane_b32 s3, v4")
a("v_and_b32 v0, 63, v0")
a("v_and_b32 v1, 15, v0")
a("v_lshrrev_b32 v2, 4, v0")
a("s_mov_b32 s10, 1280\ns_mov_b32 s11, 0x20000")
a("s_mov_b32 s14, 5242880\ns_mov_b32 s15, 0x20000")
a("s_lshl_b32 s57, s5, 8")
a("s_mul_i32 s54, s6, 160\ns_mul_i32 s55, s3, 40\ns_add_u32 s54, s54, s55")
a("s_lshl_b32 s58, s54, 1\ns_lshl_b32 s59, s54, 13\ns_add_u32 s59, s59, s57")
a("v_mul_u32_u24 v3, 81920, v2\nv_lshl_add_u32 v3, v1, 4, v3\nv_mul_u32_u24 v4, 20, v2")
a("s_waitcnt lgkmcnt(0)")
a("s_mov_b32 s12, s40\ns_mov_b32 s13, s41\ns_mov_b32 s8, s36\ns_mov_b32 s9, s37")
NQ = 10
WQ0 = 152; ACC = 120; TMP = 128; XF = 204
def wq_load(i):
    a(f"buffer_load_dwordx4 v[{WQ0+4*i}:{WQ0+3+4*i}], v3, s[12:15], s59 offen{NT}", f"wq{i}")
    if i < NQ - 1: a("s_add_u32 s59, s59, 8192")
D1 = P["D1"]
stamp(11)
wq_load(0)
a("buffer_load_dwordx4 v[192:195], v4, s[8:11], s58 offen", "x")
a("buffer_load_dword v196, v4, s[8:11], s58 offen offset:16", "x")
for i in range(1, D1): wq_load(i)
a("s_load_dwordx4 s[20:23], s[0:1], s7 offset:32")
a("s_load_dwordx4 s[32:35], s[0:1], 96")
a("s_load_dwordx2 s[28:29], s[0:1], 112")
if P["PF"]:
    a("s_getpc_b64 s[64:65]")
    a("L_pc:")
    a(f"s_sub_u32 s64, s64, L_pc-{NAME}\ns_subb_u32 s65, s65, 0")
    a("s_lshl_b32 s55, s5, 2\ns_add_u32 s55, s55, s3\ns_lshl_b32 s55, s55, 7")
    a(f"s_min_u32 s55, s55, L_end-{NAME}-64")
if STAMP:
    a("v_mov_b32 v250, 0\nv_mov_b32 v251, 0")
    a("v_writelane_b32 v250, s100, 0\nv_writelane_b32 v251, s101, 0")
a("v_mov_b32 v112, -1\nv_mov_b32 v113, -1\nv_mov_b32 v114, -1\nv_mov_b32 v115, -1")
a("v_lshlrev_b32 v6, 4, v0")
a("s_lshl_b32 s61, s4, 5\ns_add_u32 s61, s61, s5")
a(f"s_lshl_b32 s56, s4, 7\ns_add_u32 s56, s56, {EP}")
a("s_mov_b32 s16, s42\ns_mov_b32 s17, s43\ns_mov_b32 s18, 4194304\ns_mov_b32 s19, 0x20000")
a(f"s_mov_b32 s30, {WSSZ}\ns_mov_b32 s31, 0x20000")
a("v_lshlrev_b32 v5, 13, v2\nv_lshrrev_b32 v139, 1, v2\nv_xor_b32 v139, v139, v1")
a("s_lshl_b32 s54, s6, 7\ns_lshl_b32 s44, s3, 5\ns_add_u32 s54, s54, s44\ns_lshl_b32 s54, s54, 13\ns_add_u32 s44, s54, s57")
a(f"s_lshl_b32 s45, s3, 13\ns_add_u32 s45, s45, {WUK}")
a("v_lshlrev_b32 v138, 9, v1\nv_add_u32 v138, s45, v138")
for s in range(4):
    a(f"v_add_u32 v137, {4*s}, v2\nv_xor_b32 v137, v137, v1\nv_lshl_add_u32 v{144+s}, v137, 4, v138")
uk_n = [0]
def wuk_load():
    k = uk_n[0]; uk_n[0] += 1
    a(f"v_xor_b32 v138, {2*k}, v139\ns_mov_b32 m0, s45\nv_lshl_add_u32 v138, v138, 4, v5\ns_add_u32 s45, s45, 1024")
    a(f"buffer_load_dwordx4 v138, s[16:19], s44 offen{NT} lds", f"wuk{k}")
    a("s_add_u32 s44, s44, 32768")
for r in range(ACC, ACC + 8): a(f"v_mov_b32 v{r}, 0")
a("s_waitcnt lgkmcnt(0)")
a("s_load_dwordx2 s[52:53], s[28:29], s56")
if P["PF"]:
    a("s_load_dword s66, s[64:65], s55 offset:0")
    a("s_load_dword s67, s[64:65], s55 offset:64")
a("s_mov_b32 s24, s22\ns_mov_b32 s25, s23\ns_mov_b32 s26, 5242880\ns_mov_b32 s27, 0x20000")
a("s_mov_b32 s22, 4194304\ns_mov_b32 s23, 0x20000")
a("s_mov_b32 s50, s34\ns_mov_b32 s51, s35\ns_mov_b32 s34, 2560\ns_mov_b32 s35, 0x20000")
vm_first = list(a.vm)
a("s_lshl_b32 s63, s6, 3\ns_or_b32 s63, s63, s5")
a("s_cmp_lt_u32 s6, 2\ns_cbranch_scc1 L_setC")
a("s_mov_b32 s20, s38\ns_mov_b32 s21, s39")
a("s_lshl_b32 s46, s5, 1\ns_add_u32 s46, s46, s6\ns_sub_u32 s46, s46, 2")
a(f"s_mul_i32 s40, s3, {16*ROW}\ns_add_u32 s40, s40, {IMG}")
a("s_lshl_b32 s41, s46, 16\ns_lshl_b32 s54, s3, 14\ns_add_u32 s41, s41, s54")
a(f"s_mov_b32 s42, {ROW}\ns_mov_b32 s43, 1024")
for k in range(4): a(f"v_mov_b32 v{140+k}, v6")
a("s_branch L_set_done")
a("L_setC:")
a("s_lshl_b32 s54, s61, 1\ns_add_u32 s54, s54, s6\ns_mul_i32 s62, s54, 2560")
a(f"s_add_u32 s62, s62, {OP}")
a("s_mul_i32 s55, s3, 640\ns_add_u32 s54, s62, s55")
setexec(0xffffffffff)
a("buffer_store_dwordx4 v[112:115], v6, s[28:31], s54 offen sc1")
setexec(-1)
a(f"s_lshl_b32 s40, s3, 14\ns_add_u32 s40, s40, {WUV}")
a("s_lshl_b32 s41, s3, 20\ns_add_u32 s41, s41, s57\ns_lshl_b32 s54, s6, 7\ns_add_u32 s41, s41, s54")
a("s_mov_b32 s42, 1024\ns_mov_b32 s43, 65536")
a("v_and_b32 v7, 7, v0\nv_lshrrev_b32 v8, 3, v0\nv_lshlrev_b32 v8, 13, v8")
for k in range(4):
    a(f"v_xor_b32 v9, {2*k}, v7\nv_lshl_add_u32 v{140+k}, v9, 4, v8")
a("s_cmp_ge_u32 s63, 8\ns_cbranch_scc1 L_set_done")
a("s_lshl_b32 s54, s4, 3\ns_add_u32 s54, s54, s5\ns_lshl_b32 s54, s54, 12")
a("s_lshl_b32 s55, s3, 10\ns_add_u32 s54, s54, s55")
if QA: a(f"s_add_u32 s54, s54, {QA}")
a("buffer_store_dwordx4 v[112:115], v6, s[28:31], s54 offen sc1")
a("L_set_done:")
a.vm = list(vm_first)
old_ops = set(vm_first)
s3_n = [0]
def seg3_dma():
    k = s3_n[0]; s3_n[0] += 1
    a("s_mov_b32 m0, s40")
    a("s_add_u32 s40, s40, s42")
    a(f"buffer_load_dwordx4 v{140+((k>>1)&3)}, s[20:23], s41 offen{NT} lds", f"uv{k}")
    a("s_add_u32 s41, s41, s43")

nq = D1
for i in range(NQ):
    a.wait_vm("x" if i == 0 else f"wq{i}")
    if i == 0: stamp(12)
    if i == 5: stamp(13)
    if i == 9: stamp(14)
    if nq < NQ: wq_load(nq); nq += 1
    elif uk_n[0] < 8: wuk_load()
    if i == 0:
        for t in range(5):
            a(f"v_lshlrev_b32 v{XF+2*t}, 16, v{192+t}")
            a(f"v_and_b32 v{XF+1+2*t}, 0xffff0000, v{192+t}")
    if i == 3:
        a("s_cmp_ge_u32 s63, 8\ns_cbranch_scc1 L_noclr")
        a(f"s_waitcnt vmcnt({len([t for t in a.vm if t not in old_ops])})")
        a("s_barrier")
        a("s_cmp_lg_u32 s3, 0\ns_cbranch_scc1 L_noclr")
        a("v_mov_b32 v136, 0\nv_mov_b32 v137, 1")
        setexec(1)
        sv = list(a.vm)
        a("global_atomic_add v136, v137, s[50:51] sc1")
        a.vm = sv
        setexec(-1)
        a("L_noclr:")
    xp = XF + (i & ~1)
    sel = "op_sel_hi:[1,0,1]" if i % 2 == 0 else "op_sel:[0,1,0] op_sel_hi:[1,1,1]"
    for k in range(4):
        w = WQ0 + 4 * i + k; t = TMP + 2 * k
        a(f"v_lshlrev_b32 v{t}, 16, v{w}")
        a(f"v_and_b32 v{t+1}, 0xffff0000, v{w}")
    for k in range(4):
        t = TMP + 2 * k
        a(f"v_pk_fma_f32 v[{ACC+2*k}:{ACC+1+2*k}], v[{t}:{t+1}], v[{xp}:{xp+1}], v[{ACC+2*k}:{ACC+1+2*k}] {sel}")
for k in range(4): a(f"v_permlane32_swap_b32 v{ACC+2*k}, v{ACC+1+2*k}")
a("v_and_b32 v136, 1, v2\nv_lshlrev_b32 v136, 1, v136\nv_lshrrev_b32 v137, 1, v2\nv_or_b32 v136, v136, v137")
for k in range(4): a(f"v_add_f32 v{ACC+2*k}, v{ACC+2*k}, v{ACC+1+2*k}")
a("v_lshl_add_u32 v136, v1, 3, v136\nv_lshlrev_b32 v136, 2, v136")
a(f"v_permlane16_swap_b32 v{ACC}, v{ACC+2}")
a(f"v_permlane16_swap_b32 v{ACC+4}, v{ACC+6}")
a("s_lshl_b32 s54, s3, 9")
a("v_add_u32 v136, s54, v136")
a(f"v_add_f32 v{ACC}, v{ACC}, v{ACC+2}")
a(f"v_add_f32 v{ACC+4}, v{ACC+4}, v{ACC+6}")
a.wait_lg_all()
a("s_add_u32 s52, s52, 1")
a(f"ds_write_b32 v136, v{ACC} offset:{QP}")
a(f"ds_write_b32 v136, v{ACC+4} offset:{QP+16}")
while uk_n[0] < 8: wuk_load()
a("v_lshlrev_b32 v136, 3, v0")
a("v_mov_b32 v106, s52\nv_mov_b32 v107, s53")
a(f"s_lshl_b32 s60, s61, 12\ns_add_u32 s60, s60, {QX}\ns_lshl_b32 s54, s6, 10\ns_add_u32 s54, s54, s60")
a.wait_lg_all()
a("s_barrier")
stamp(2)
vm_A = list(a.vm)
NE = P["NE"]
a("s_cmp_lg_u32 s3, 0\ns_cbranch_scc1 L_others")
for w in range(4):
    a(f"ds_read_b64 v[{112+2*w}:{113+2*w}], v136 offset:{QP+512*w}")
a("s_mov_b32 s55, 0")
a("v_mov_b32 v9, 0")
a.wait_lg_all()
a("v_pk_add_f32 v[112:113], v[112:113], v[114:115]")
a("v_pk_add_f32 v[108:109], v[116:117], v[118:119]")
a("v_pk_add_f32 v[104:105], v[112:113], v[108:109]")
a("buffer_store_dwordx4 v[104:107], v6, s[28:31], s54 offen sc1")
stamp(3)
a("L_qs:")
for jj in range(4):
    a(f"s_load_dwordx2 s[{64+2*jj}:{65+2*jj}], s[28:29], s60 offset:{jj*1024+1016} glc")
a("s_add_u32 s55, s55, 1")
a("s_waitcnt lgkmcnt(0)")
for jj in range(4): a(f"s_xor_b64 s[{64+2*jj}:{65+2*jj}], s[{64+2*jj}:{65+2*jj}], s[52:53]")
a("s_or_b64 s[64:65], s[64:65], s[66:67]\ns_or_b64 s[68:69], s[68:69], s[70:71]")
a(f"s_cmp_ge_u32 s55, {SPIN}\ns_cbranch_scc1 L_qg")
a("s_or_b64 s[64:65], s[64:65], s[68:69]\ns_cbranch_scc1 L_qs")
a("L_qg:")
def qgather():
    for jj in range(4):
        a(f"buffer_load_dwordx4 v[{120+4*jj}:{123+4*jj}], v6, s[28:31], s60 offen offset:{1024*jj} sc1")
    a("global_load_dword v136, v9, s[50:51] sc1")
qgather()
stamp(1)
a("s_barrier")
for k in range(NE): seg3_dma()
a(f"s_waitcnt vmcnt({NE})")
a("L_qg_chk:")
a(f"v_min_u32 v136, {NCLR}, v136\nv_xor_b32 v136, {NCLR}, v136")
for jj in range(4):
    a(f"v_xor_b32 v{122+4*jj}, s52, v{122+4*jj}\nv_xor_b32 v{123+4*jj}, s53, v{123+4*jj}")
    a(f"v_or3_b32 v136, v136, v{122+4*jj}, v{123+4*jj}")
a("v_cmp_ne_u32 vcc, 0, v136")
a("s_cbranch_vccz L_qg_ok")
a("s_add_u32 s55, s55, 1")
a(f"s_cmp_ge_u32 s55, {SPIN}\ns_cbranch_scc1 L_qg_ok")
qgather()
a("s_waitcnt vmcnt(0)")
a("s_branch L_qg_chk")
a("L_qg_ok:")
a("v_pk_add_f32 v[120:121], v[120:121], v[124:125]")
a("v_pk_add_f32 v[128:129], v[128:129], v[132:133]")
a("v_pk_add_f32 v[120:121], v[120:121], v[128:129]")
a("v_lshlrev_b32 v9, 2, v0")
a("v_cvt_pk_bf16_f32 v120, v120, v121")
a(f"ds_write_b32 v9, v120 offset:{QB}")
a("s_branch L_qx_done")
a("L_others:")
if STAMP and not P["FINE"]:
    a("s_nop 0")
a("s_barrier")
s3_n[0] = 0
for k in range(NE): seg3_dma()
a(f"s_waitcnt vmcnt({NE})")
a("L_qx_done:")
a.vm = [f"uv{k}" for k in range(NE)]; a.lg = []
for s in range(4):
    for t in range(2):
        r = 32 + (t * 4 + s) * 4
        a(f"ds_read_b128 v[{r}:{r+3}], v{144+s} offset:{t*256}")
a("v_lshlrev_b32 v9, 4, v2")
a(f"s_mov_b32 s54, 0x{f2u(SCALE):08x}")
a("s_lshl_b32 s60, s61, 10\ns_lshl_b32 s55, s6, 8\ns_add_u32 s60, s60, s55\ns_lshl_b32 s55, s3, 6\ns_add_u32 s60, s60, s55")
if QA: a(f"s_add_u32 s60, s60, {QA}")
a("v_lshlrev_b32 v8, 2, v0")
a.wait_lg_all()
a("s_barrier")
stamp(4)
for s in range(4):
    a(f"ds_read_b128 v[{120+4*s}:{123+4*s}], v9 offset:{QB+64*s}", f"q{s}")
for s in range(4):
    a.wait_lg(f"q{s}")
    for t in range(2):
        r = 32 + (t * 4 + s) * 4
        c = "0" if s == 0 else f"v[{64+4*t}:{67+4*t}]"
        a(f"v_mfma_f32_16x16x32_bf16 v[{64+4*t}:{67+4*t}], v[{120+4*s}:{123+4*s}], v[{r}:{r+3}], {c}")
a("v_mul_f32 v64, s54, v64\nv_mul_f32 v68, s54, v68")
a("v_cvt_pk_bf16_f32 v64, v64, v68")
a("v_min_u32 v64, -2, v64")
setexec(0xffff)
a("buffer_store_dword v64, v8, s[28:31], s60 offen sc1", "qa")
setexec(-1)
stamp(5)
vm_role = list(a.vm); pend_role = list(pend)
a("s_cmp_lt_u32 s6, 2\ns_cbranch_scc1 L_roleC")

while s3_n[0] < 16: seg3_dma()
a("s_and_b32 s47, s3, 1\ns_lshr_b32 s48, s3, 1")
a("v_lshlrev_b32 v5, 10, v1\nv_lshl_add_u32 v5, v2, 4, v5")
a("s_lshl_b32 s54, s4, 15\ns_lshl_b32 s55, s47, 14\ns_add_u32 s54, s54, s55\ns_lshl_b32 s49, s48, 9\ns_add_u32 s60, s54, s49")
if QA: a(f"s_add_u32 s60, s60, {QA}")
a(f"s_add_u32 s54, s49, {IMG}")
a(f"v_mul_u32_u24 v7, {ROW}, v1\nv_lshl_add_u32 v7, v2, 4, v7\nv_add_u32 v7, s54, v7")
a(f"v_lshrrev_b32 v8, 2, v0\nv_mul_u32_u24 v8, {ROW}, v8\nv_and_b32 v10, 3, v0\nv_lshl_add_u32 v8, v10, 3, v8\nv_add_u32 v8, s54, v8")
a(f"s_lshl_b32 s54, s3, 12\ns_add_u32 s54, s54, {XB}\nv_add_u32 v11, s54, v6")
a(f"s_xor_b32 s54, s3, 2\ns_lshl_b32 s54, s54, 12\ns_add_u32 s54, s54, {XB}\nv_add_u32 v12, s54, v6")
a("v_lshlrev_b32 v13, 18, v2\nv_lshl_add_u32 v13, v1, 4, v13\nv_lshlrev_b32 v14, 10, v1")
a("s_lshl_b32 s54, s4, 5\ns_lshl_b32 s55, s47, 4\ns_add_u32 s54, s54, s55\ns_lshl_b32 s54, s54, 6\ns_add_u32 s54, s54, s46")
a(f"s_lshl_b32 s64, s54, 10\ns_add_u32 s64, s64, s49\ns_add_u32 s64, s64, {PO}")
a("s_add_u32 s65, s64, 65536\ns_add_u32 s66, s65, 65536\ns_add_u32 s67, s66, 65536")
if P["STV"]:
    a(f"s_lshl_b32 s68, s4, 6\ns_add_u32 s68, s68, s46\ns_lshl_b32 s68, s68, 9\ns_lshl_b32 s55, s47, 8\ns_add_u32 s68, s68, s55\ns_add_u32 s68, s68, {ST}")
    a("v_mov_b32 v14, v6")
else:
    a(f"s_lshl_b32 s68, s54, 4\ns_add_u32 s68, s68, {ST}")
a("s_mov_b32 s55, 0")
def qloads():
    for s in range(8):
        a(f"buffer_load_dwordx4 v[{32+4*s}:{35+4*s}], v5, s[28:31], s60 offen offset:{64*s} sc1")
qloads()
a("s_waitcnt vmcnt(8)")
a("s_barrier")
stamp(6)
for s in range(8):
    for t in range(4):
        r = (t * 8 + s) * 4
        a(f"ds_read_b128 a[{r}:{r+3}], v7 offset:{t*16*ROW + s*64}")
for T in range(16):
    for s2 in range(2):
        for u in range(2):
            rr = 128 + (T * 2 + s2) * 4 + 2 * u
            a(f"ds_read_b64_tr_b16 a[{rr}:{rr+1}], v8 offset:{(32*s2+16*u)*ROW + T*32}")
a("L_qa_chk:")
a("s_waitcnt vmcnt(0)")
sentinel_max(32, 10, 108)
a("v_cmp_eq_u32 vcc, -1, v10")
a("s_cbranch_vccz L_qa_ok")
a("s_add_u32 s55, s55, 1")
a(f"s_cmp_ge_u32 s55, {SPIN}\ns_cbranch_scc1 L_qa_ok")
if P["SLP"]: a(f"s_sleep {P['SLP']}")
if P["MASK"]: a("s_mov_b64 exec, vcc")
qloads()
a("s_branch L_qa_chk")
a("L_qa_ok:")
if P["MASK"]: setexec(-1)
a.vm = []
a.wait_lg_all()
stamp(7)
fs("B", "qok")
for s in range(8):
    for t in range(4):
        r = (t * 8 + s) * 4
        c = "0" if s == 0 else f"v[{64+4*t}:{67+4*t}]"
        a(f"v_mfma_f32_16x16x32_bf16 v[{64+4*t}:{67+4*t}], a[{r}:{r+3}], v[{32+4*s}:{35+4*s}], {c}")
        if s == 7 and t >= 2: pass
fs("B", "Sissued")
for t in range(4):
    a(f"ds_write_b128 v11, v[{64+4*t}:{67+4*t}] offset:{t*1024}")
a.wait_lg_all()
fs("B", "xw")
a("s_barrier")
fs("B", "bar")
for t in range(4):
    a(f"ds_read_b128 v[{80+4*t}:{83+4*t}], v12 offset:{t*1024}", f"x{t}")
for t in range(4):
    a.wait_lg(f"x{t}")
    for k in range(4):
        a(f"v_add_f32 v{64+4*t+k}, v{64+4*t+k}, v{80+4*t+k}")
    if t == 0: a("v_max3_f32 v104, v64, v65, v66\nv_mov_b32 v105, v67")
    else: a(f"v_max3_f32 v104, v104, v{64+4*t}, v{65+4*t}\nv_max3_f32 v105, v105, v{66+4*t}, v{67+4*t}")
fs("B", "added")
a("v_max_f32 v104, v104, v105")
for x in xlane_reduce("v_max_f32", 104, 108): a(x)
for r in range(64, 72): a(f"v_sub_f32 v{r}, v{r}, v104")
for r in range(64, 72): a(f"v_exp_f32 v{r}, v{r}")
for k in range(4): a(f"v_cvt_pk_bf16_f32 v{96+k}, v{64+2*k}, v{65+2*k}")
fs("B", "P0")
fill = []
for r in range(72, 80): fill += [f"v_sub_f32 v{r}, v{r}, v104"]
for r in range(72, 80): fill += [f"v_exp_f32 v{r}, v{r}"]
for k in range(4, 8): fill += [f"v_cvt_pk_bf16_f32 v{96+k}, v{64+2*k}, v{65+2*k}"]
for T in range(16):
    rr = 128 + (T * 2) * 4
    a(f"v_mfma_f32_16x16x32_bf16 v[{128+4*T}:{131+4*T}], v[96:99], a[{rr}:{rr+3}], 0")
    budget = 8
    while fill and budget > 0:
        x = fill.pop(0); a(x); budget -= 8 if "exp" in x else 4
for x in fill: a(x)
fs("B", "PV0")
sums = [f"v_add_f32 v{64+k}, v{64+k}, v{72+k}" for k in range(8)] + [f"v_add_f32 v{64+k}, v{64+k}, v{68+k}" for k in range(4)] + \
       ["v_add_f32 v64, v64, v65", "v_add_f32 v66, v66, v67", "v_add_f32 v105, v64, v66"] + xlane_reduce("v_add_f32", 105, 108)
def pack(Q):
    L = []
    for r in range(4):
        d = 192 + (Q * 4 + r) * 4
        for k in range(4):
            T = 8 * Q + 2 * k
            L.append(f"v_cvt_pk_bf16_f32 v{d+k}, v{128+4*T+r}, v{128+4*(T+1)+r}")
        L.append(f"buffer_store_dwordx4 v[{d}:{d+3}], v13, s[28:31], s{64+r} offen offset:{Q*256} sc1")
    return L
fill = sums[:16]
sums = sums[16:]
for T in range(16):
    rr = 128 + (T * 2 + 1) * 4
    a(f"v_mfma_f32_16x16x32_bf16 v[{128+4*T}:{131+4*T}], v[100:103], a[{rr}:{rr+3}], v[{128+4*T}:{131+4*T}]")
    if T == 9: fill += pack(0)
    for _ in range(2):
        if fill: a(fill.pop(0))
fs("B", "PV1")
for x in fill: a(x)
for x in pack(1): a(x)
fs("B", "stored")
for x in sums: a(x)
stamp(8)
a.wait_vm_all()
fs("B", "vm0")
a("s_barrier")
a("s_cmp_lg_u32 s48, 0\ns_cbranch_scc1 L_b_done")
setexec(0xffff)
a("buffer_store_dwordx4 v[104:107], v14, s[28:31], s68 offen sc1")
setexec(-1)
a("L_b_done:")
fs_flush("B")
stamp(9)
stamp_flush()
a("s_cmp_lg_u32 s3, 0\ns_cbranch_scc1 L_fin")
a("s_cmp_ge_u32 s46, 20\ns_cbranch_scc1 L_fin")
a("v_lshrrev_b32 v7, 3, v0\nv_mul_u32_u24 v7, 2560, v7\nv_and_b32 v8, 7, v0\nv_lshl_add_u32 v7, v8, 4, v7")
a("s_mul_i32 s54, s4, 163840\ns_lshl_b32 s55, s46, 7\ns_add_u32 s54, s54, s55")
a(f"s_add_u32 s64, s54, {OP}")
for i in range(1, 8): a(f"s_add_u32 s{64+i}, s{63+i}, 20480")
a("s_mul_i32 s54, s4, 1280\ns_lshl_b32 s55, s46, 6\ns_add_u32 s54, s54, s55")
a("v_lshlrev_b32 v9, 3, v0")
a("s_mov_b32 s55, 0")
a("L_d_poll:")
for i in range(8):
    a(f"buffer_load_dwordx4 v[{32+4*i}:{35+4*i}], v7, s[28:31], s{64+i} offen sc1")
a("s_add_u32 s55, s55, 1")
a("s_waitcnt vmcnt(0)")
sentinel_max(32, 10, 108)
a("v_cmp_eq_u32 vcc, -1, v10")
a(f"s_cmp_ge_u32 s55, {SPIN}\ns_cbranch_scc1 L_d_ok")
a("s_cbranch_vccnz L_d_poll")
a("L_d_ok:")
for st, rng in ((16, range(32, 48)), (8, range(32, 40)), (4, range(32, 36))):
    for r in rng: a(f"v_add_f32 v{r}, v{r}, v{r+st}")
for k in range(4):
    a(f"v_add_f32_dpp v{36+k}, v{32+k}, v{32+k} row_ror:8 row_mask:0xf bank_mask:0xf")
for k in range(4): a(f"v_mov_b32 v{40+k}, v{36+k}")
for k in range(4): a(f"v_permlane16_swap_b32 v{36+k}, v{40+k}")
for k in range(4): a(f"v_add_f32 v{36+k}, v{36+k}, v{40+k}")
for k in range(4): a(f"v_mov_b32 v{40+k}, v{36+k}")
for k in range(4): a(f"v_permlane32_swap_b32 v{36+k}, v{40+k}")
for k in range(4): a(f"v_add_f32 v{36+k}, v{36+k}, v{40+k}")
a("v_cvt_pk_bf16_f32 v36, v36, v37\nv_cvt_pk_bf16_f32 v37, v38, v39")
setexec(0xff)
a("buffer_store_dwordx2 v[36:37], v9, s[32:35], s54 offen")
a("s_cmp_lg_u32 s46, 0\ns_cbranch_scc1 L_noep")
setexec(1)
a("buffer_store_dwordx2 v[106:107], v9, s[28:31], s56 offen sc1")
a("L_noep:")
setexec(-1)
stamp(10)
stamp_flush()
a("s_branch L_fin")

a("L_roleC:")
a.vm = vm_role; a.lg = []; a.hist = []
pend[:] = pend_role
s3_n[0] = NE
a("s_and_b32 s54, s3, 1\ns_lshl_b32 s54, s54, 3")
a("v_lshl_add_u32 v7, v2, 1, s54\nv_xor_b32 v7, v7, v1\nv_lshlrev_b32 v7, 4, v7")
a("v_mul_u32_u24 v8, 1280, v2\nv_add_u32 v7, v7, v8")
a("s_lshl_b32 s54, s5, 7\ns_lshl_b32 s55, s6, 6\ns_add_u32 s54, s54, s55\ns_lshl_b32 s55, s3, 2\ns_add_u32 s54, s54, s55\ns_mul_i32 s47, s54, 1280")
a(f"s_mul_i32 s46, s3, 5120\ns_add_u32 s46, s46, {WO}")
a("v_lshrrev_b32 v8, 2, v1\nv_and_b32 v10, 3, v0\nv_and_b32 v16, 1, v2\nv_and_b32 v17, 1, v10\nv_lshrrev_b32 v18, 1, v10")
a("v_lshlrev_b32 v19, 1, v8")
a("v_lshrrev_b32 v20, 1, v2\nv_lshl_add_u32 v20, v16, 6, v20\nv_lshl_add_u32 v20, v8, 4, v20")
a(f"s_lshl_b32 s54, s3, 14\ns_add_u32 s54, s54, {WUV}")
a("v_lshlrev_b32 v20, 7, v20\nv_lshl_add_u32 v20, v17, 3, v20\nv_add_u32 v20, s54, v20")
for t in range(4):
    a(f"v_add_u32 v21, {2*t}, v18\nv_xor_b32 v21, v21, v19\nv_lshl_add_u32 v{24+t}, v21, 4, v20")
a("v_lshlrev_b32 v13, 3, v16\nv_lshl_add_u32 v13, v8, 1, v13")
a("s_lshl_b32 s54, s3, 2\nv_add_u32 v14, s54, v18")
a("v_xor_b32 v21, v14, v13\nv_add_u32 v14, 2, v14\nv_xor_b32 v14, v14, v13")
a(f"v_mul_u32_u24 v22, 5120, v2\nv_lshl_add_u32 v22, v8, 8, v22\nv_lshl_add_u32 v22, v17, 3, v22\nv_add_u32 v22, {WO}, v22")
a("v_lshl_add_u32 v12, v21, 4, v22\nv_lshl_add_u32 v13, v14, 4, v22")
a("v_add_u32 v14, 40960, v12\nv_add_u32 v11, 40960, v13")
WOA = {(0, 0): 12, (1, 0): 13, (0, 1): 14, (1, 1): 11}
a(f"v_lshrrev_b32 v23, 2, v0\nv_mul_u32_u24 v23, {ROW}, v23\nv_lshl_add_u32 v23, v10, 3, v23")
a(f"s_lshl_b32 s54, s3, 8\ns_add_u32 s54, s54, {GAT}\nv_add_u32 v23, s54, v23")
a("v_and_b32 v28, 32, v0\nv_lshl_add_u32 v28, v8, 3, v28\nv_lshl_add_u32 v28, v16, 2, v28\nv_add_u32 v28, v28, v10")
a("s_lshl_b32 s54, s3, 7\nv_lshl_add_u32 v28, v28, 1, s54\nv_lshl_add_u32 v29, v2, 4, s54")
a("v_lshlrev_b32 v30, 4, v0\ns_lshl_b32 s55, s3, 2\nv_add_u32 v31, s55, v30")
a("s_lshl_b32 s55, s3, 7\ns_add_u32 s62, s62, s55")
a("v_lshrrev_b32 v19, 5, v0\nv_lshlrev_b32 v19, 9, v19\nv_and_b32 v20, 31, v0\nv_lshl_add_u32 v19, v20, 2, v19")
while s3_n[0] < 16:
    throttle(P["DC0"] if s3_n[0] < P["NC0"] else P["DC1"]); seg3_dma()
wo_list = [(aa, cb) for aa in range(4) for cb in range(5)]
def wo_dma(k):
    aa, cb = wo_list[k]
    a("s_mov_b32 m0, s46")
    a(f"s_add_u32 s46, s46, {1024 if cb < 4 else 16384}")
    a(f"buffer_load_dwordx4 v7, s[24:27], s47 offen{NT} lds", f"wo{k}")
    a(f"s_add_u32 s47, s47, {256 if cb < 4 else 16*1280 - 1024}")
a("s_barrier")
k = 0
while any(t and t.startswith("uv") for t in a.vm) and k < 20:
    throttle(P["DC2"]); wo_dma(k); k += 1
a.wait_vm("uv15")
stamp(6)
for t in range(4):
    for s in range(4):
        for u in range(2):
            rr = (t * 4 + s) * 4 + 2 * u
            a(f"ds_read_b64_tr_b16 a[{rr}:{rr+1}], v{24+t} offset:{(4*s+2*u)*128}")
while k < 20:
    throttle(P["DC2"]); wo_dma(k); k += 1
a.wait_lg_all()
a("s_barrier")
stamp(9)
stamp_flush()
a(f"s_lshl_b32 s54, s61, 6\ns_lshl_b32 s55, s3, 4\ns_add_u32 s54, s54, s55")
a(f"s_lshl_b32 s17, s54, 10\ns_add_u32 s17, s17, {PO}")
a(f"s_mul_i32 s18, s3, {16*ROW}\ns_add_u32 s18, s18, {GAT}")
a("s_mov_b32 s13, s62\ns_mov_b32 s16, 0")
def gather_dma():
    for i in range(16):
        a("s_mov_b32 m0, s18")
        a(f"s_add_u32 s18, s18, {ROW}")
        a(f"buffer_load_dwordx4 v6, s[28:31], s17 offen sc1 lds", "gat")
        a("s_add_u32 s17, s17, 1024")
if P["STV"]:
    a(f"s_lshl_b32 s12, s4, 15\ns_lshl_b32 s55, s5, 4\ns_add_u32 s12, s12, s55\ns_add_u32 s12, s12, {ST}")
    a("v_lshlrev_b32 v21, 9, v0")
    a("v_cmp_eq_u32 s[56:57], 1, v16\nv_cmp_lt_u32 s[58:59], 31, v0")
    a("L_st:")
    a("buffer_load_dwordx4 v[120:123], v21, s[28:31], s12 offen sc1")
    a("s_add_u32 s16, s16, 1")
    a("s_waitcnt vmcnt(0)")
    a("v_xor_b32 v122, s52, v122\nv_xor_b32 v123, s53, v123\nv_or_b32 v122, v122, v123")
    a("v_cmp_ne_u32 vcc, 0, v122")
    a(f"s_cmp_ge_u32 s16, {SPIN}\ns_cbranch_scc1 L_st_ok")
    a("s_cbranch_vccz L_st_ok")
    a("s_mov_b64 exec, vcc")
    a("s_branch L_st")
    a("L_st_ok:")
    setexec(-1)
    a.vm = []
    gather_dma()
    stamp(7)
    fs("C", "flags")
else:
    a(f"s_lshl_b32 s12, s54, 4\ns_add_u32 s12, s12, {ST}")
    SB = 36
    a("s_mov_b32 s8, s52\ns_mov_b32 s9, s53")
    a("s_lshl_b32 s54, s3, 7\nv_lshlrev_b32 v21, 3, v0\nv_add_u32 v22, s54, v21")
    a("L_st:")
    for i in range(4):
        a(f"s_load_dwordx16 s[{SB+16*i}:{SB+16*i+15}], s[28:29], s12 offset:{64*i} glc")
    a("s_add_u32 s16, s16, 1")
    a.wait_lg_all()
    for i in range(16):
        r = SB + 4 * i + 2
        a(f"s_xor_b64 s[{r}:{r+1}], s[{r}:{r+1}], s[8:9]")
        if i: a(f"s_or_b64 s[{SB+2}:{SB+3}], s[{SB+2}:{SB+3}], s[{r}:{r+1}]")
    a(f"s_cmp_ge_u32 s16, {SPIN}\ns_cbranch_scc1 L_st_ok")
    a(f"s_cmp_lg_u64 s[{SB+2}:{SB+3}], 0\ns_cbranch_scc1 L_st")
    a("L_st_ok:")
    gather_dma()
    for i in range(16):
        a(f"v_writelane_b32 v120, s{SB+4*i}, {i}")
        a(f"v_writelane_b32 v121, s{SB+4*i+1}, {i}")
    setexec(0xffff)
    a(f"ds_write_b64 v22, v[120:121] offset:{SL}")
    setexec(-1)
    a("v_cmp_eq_u32 s[56:57], 1, v16\nv_cmp_lt_u32 s[58:59], 31, v0")
    stamp(7)
    fs("C", "flags")
    a.wait_lg_all()
    a("s_barrier")
    fs("C", "barX")
    a(f"ds_read_b64 v[120:121], v21 offset:{SL}")
    a.wait_lg_all()
def wave_reduce(op, r, t):
    for sh in (8, 4, 2, 1):
        a(f"{op}_dpp v{r}, v{r}, v{r} row_ror:{sh} row_mask:0xf bank_mask:0xf")
    for x in xlane_reduce(op, r, t): a(x)
a("v_mov_b32 v122, v120")
wave_reduce("v_max_f32", 122, 123)
a("v_sub_f32 v120, v120, v122\nv_exp_f32 v120, v120\nv_mul_f32 v121, v120, v121")
wave_reduce("v_add_f32", 121, 123)
a("v_rcp_f32 v121, v121\nv_mul_f32 v120, v120, v121\nv_cvt_pk_bf16_f32 v120, v120, v120")
a(f"ds_write_b16 v28, v120 offset:{FB}")
a.wait_lg_all()
a(f"ds_read_b128 v[96:99], v29 offset:{FB}\nds_read_b128 v[100:103], v29 offset:{FB+64}")
fs("C", "f")
a.wait_vm("wo19")
a("s_barrier")
fs("C", "barW")
for s in range(2):
    for cb in range(5):
        for e in range(2):
            for u in range(2):
                rr = 64 + ((cb * 2 + e) * 2 + s) * 4 + 2 * u
                a(f"ds_read_b64_tr_b16 a[{rr}:{rr+1}], v{WOA[(e, s)]} offset:{(4*u*5+cb)*1024}")
a.wait_vm_all()
stamp(8)
fs("C", "gat")
a("s_barrier")
fs("C", "barY")
for T in range(8):
    for s2 in range(2):
        for u in range(2):
            rr = 32 + (T * 2 + s2) * 4 + 2 * u
            a(f"ds_read_b64_tr_b16 v[{rr}:{rr+1}], v23 offset:{(32*s2+16*u)*ROW + T*32}", f"g{T}_{s2}")
def comb(T):
    for s2 in range(2):
        rr = 32 + (T * 2 + s2) * 4
        a.wait_lg(f"g{T}_{s2}")
        c = "0" if s2 == 0 else f"v[{128+4*T}:{131+4*T}]"
        a(f"v_mfma_f32_16x16x32_bf16 v[{128+4*T}:{131+4*T}], v[{rr}:{rr+3}], v[{96+4*s2}:{99+4*s2}], {c}")
def cvt3(s):
    T = 2 * s
    for k in range(4):
        a(f"v_cvt_pk_bf16_f32 v{160+4*s+k}, v{128+4*T+2*k}, v{129+4*T+2*k}")
def g3(s):
    for t in range(4):
        rr = (t * 4 + s) * 4
        c = "0" if s == 0 else f"v[{176+4*t}:{179+4*t}]"
        a(f"v_mfma_f32_16x16x32_bf16 v[{176+4*t}:{179+4*t}], v[{160+4*s}:{163+4*s}], a[{rr}:{rr+3}], {c}")
comb(0); comb(1); comb(2); comb(3); comb(4); comb(5); cvt3(0); comb(6); comb(7); cvt3(1); g3(0); cvt3(2); g3(1); cvt3(3); g3(2); g3(3)
fs("C", "g3issued")
a("v_cndmask_b32 v192, v176, v180, s[56:57]\nv_cndmask_b32 v193, v184, v188, s[56:57]\nv_cndmask_b32 v192, v192, v193, s[58:59]")
a(f"ds_write_b32 v31, v192 offset:{R3}")
a.wait_lg_all()
a("s_barrier")
fs("C", "barZ")
a(f"ds_read_b128 v[36:39], v30 offset:{R3}")
a.wait_lg_all()
a("v_add_f32 v36, v36, v37\nv_add_f32 v38, v38, v39\nv_add_f32 v36, v36, v38\nv_cvt_pk_bf16_f32 v36, v36, v36")
a(f"ds_write_b16 v28, v36 offset:{CX}")
a.wait_lg_all()
a(f"ds_read_b128 v[36:39], v29 offset:{CX}", "x0")
a(f"ds_read_b128 v[40:43], v29 offset:{CX+64}", "x1")
a.wait_lg("x1")
fs("C", "ctx")
def outst(i):
    d0 = 48 + (2 * i) * 8; d1 = d0 + 8
    L = [f"v_cndmask_b32 v{100+2*i}, v{d0}, v{d0+4}, s[56:57]"]
    if i < 2:
        L += [f"v_cndmask_b32 v{101+2*i}, v{d1}, v{d1+4}, s[56:57]", f"v_cndmask_b32 v{100+2*i}, v{100+2*i}, v{101+2*i}, s[58:59]"]
    L += [f"v_min_u32 v{100+2*i}, -2, v{100+2*i}"]
    if i == 2: L += ["s_mov_b32 exec_hi, 0"]
    L += [f"buffer_store_dword v{100+2*i}, v19, s[28:31], s13 offen offset:{1024*i} sc1"]
    return L
fill = []
cnt = 0
for cb in range(5):
    for e in range(2):
        for s in range(2):
            rr = 64 + ((cb * 2 + e) * 2 + s) * 4
            d = 48 + (cb * 2 + e) * 4
            c = "0" if s == 0 else f"v[{d}:{d+3}]"
            a(f"v_mfma_f32_16x16x32_bf16 v[{d}:{d+3}], v[{36+4*s}:{39+4*s}], a[{rr}:{rr+3}], {c}")
            cnt += 1
            if cnt == 12: fill += outst(0)
            if fill: a(fill.pop(0))
fs("C", "g4issued")
for x in fill: a(x)
for x in outst(1): a(x)
for x in outst(2): a(x)
setexec(-1)
stamp(10)
stamp_flush()
fs("C", "end")
fs_flush("C")

a("L_fin:")
if STAMP:
    a(f"s_cmp_lg_u32 s3, {P['SW']}\ns_cbranch_scc1 L_end")
    a(f"s_mul_i32 s54, s2, {NS*8}\ns_add_u32 s54, s54, {STAMPS}")
    a("v_lshlrev_b32 v7, 3, v0\nv_mov_b32 v252, v250\nv_mov_b32 v253, v251")
    setexec((1 << NS) - 1)
    a("buffer_store_dwordx2 v[252:253], v7, s[28:31], s54 offen")
    if P["AMP"] >= 0:
        a(f"v_readlane_b32 s54, v250, {P['AMP']}\nv_readlane_b32 s55, v250, 0")
        a("s_nop 3\ns_sub_u32 s54, s54, s55")
        a("s_cmp_gt_u32 s54, 10000\ns_cbranch_scc1 L_end")
        a(f"s_mul_i32 s54, s54, {P['AMPK']}")
        a("s_memrealtime s[96:97]\ns_waitcnt lgkmcnt(0)\ns_add_u32 s54, s54, s96")
        a("L_amp:\ns_memrealtime s[96:97]\ns_waitcnt lgkmcnt(0)\ns_sub_u32 s55, s96, s54\ns_cmp_lt_i32 s55, 0\ns_cbranch_scc1 L_amp")
a("L_end:")
a("s_endpgm")
a.raw('''.section .rodata,"a"
.p2align 6
.amdhsa_kernel %s
  .amdhsa_next_free_vgpr 512
  .amdhsa_next_free_sgpr 102
  .amdhsa_accum_offset 256
  .amdhsa_group_segment_fixed_size 0
  .amdhsa_kernarg_size 120
  .amdhsa_user_sgpr_count 2
  .amdhsa_user_sgpr_kernarg_segment_ptr 1
  .amdhsa_system_sgpr_workgroup_id_x 1
.end_amdhsa_kernel''' % NAME)
sys.stdout.write(a.text())
```

```python
import sys, os, struct
sys.path.insert(0, os.path.dirname(__file__))
from asmlib import Asm

NAME = "concat_heads__compressed_kv_cla__compressed_kv_cla__decode_kernel"
P = dict(STAMP=0, FINE=0, AMP=-1, AMPK=20, NT=1, SPIN=40000, PF=1, SW=0,
         STG=1, PRG=0, HBP=1, HB=0, CPF=0, CPN=0, TAP=0, NP=0, MAP=2, WOE=0, PSL=0, STS=16, IL=0, SLOW=1, EH=0, HP=1, DSA=0, PVI=1, NEB=4, D1=6, NE=4, DC0=3, NC0=8, DC1=10, DC2=14, SLP=0, MASK=1, STV=0)
for x in sys.argv[1:]:
    k, v = x.split("="); P[k] = int(v)
NT = " nt" if P["NT"] else ""
SPIN = P["SPIN"]; STAMP = P["STAMP"]

QA, EP, OP, QX, PO, ST, STAMPS = 0x0, 0x10000, 0x18000, 0x80000, 0x100000, 0x500000, 0x800000
WSSZ = 0x900000
NCLR = 16
NS = 16
QP = 0; QB = QP + 2048; QO = QB + 256; SL = QO + 512; FB = SL + 512; R3 = FB + 512; CX = R3 + 1024
IMG = 5376
assert CX + 512 <= IMG and IMG % 256 == 0
ROW = 1056
XB = IMG + 64 * ROW
WUV = IMG; GAT = IMG; WO = IMG + 64 * ROW
LDS_BYTES = WO + 81920
WUK = WO + 16384
assert LDS_BYTES <= 163840
SCALE = (128 ** -0.5) * 1.4426950408889634
def f2u(x): return struct.unpack("<I", struct.pack("<f", x))[0]

a = Asm()
a.raw(open(os.path.join(os.path.dirname(__file__), "header.txt")).read().rstrip("\n"))
a.raw(f"; @launch grid=(256,1,1) block=(256,1,1) lds={LDS_BYTES}")
a.raw('.amdgcn_target "amdgcn-amd-amdhsa--gfx950"\n.text\n.globl %s\n.p2align 8\n.type %s,@function\n%s:' % (NAME, NAME, NAME))

def setexec(m):
    if m == -1: a("s_mov_b64 exec, -1")
    elif m < 64: a(f"s_mov_b64 exec, {m}")
    else:
        a(f"s_mov_b32 exec_lo, 0x{m & 0xffffffff:x}")
        a(f"s_mov_b32 exec_hi, 0x{m >> 32:x}")
FS0 = 70
fs_used = {}
def fs(role, name):
    if not P["FINE"]: return
    L = fs_used.setdefault(role, [])
    r = FS0 + 2 * len(L); assert r <= 98
    L.append(name)
    a(f"s_memtime s[{r}:{r+1}]")
def fs_flush(role):
    if not P["FINE"]: return
    a("s_waitcnt lgkmcnt(0)")
    for k, nm in enumerate(fs_used[role]):
        a(f"s_sub_u32 s{FS0+2*k+1}, s{FS0+2*k}, s{FS0}")
    a("v_mov_b32 v250, 0\nv_mov_b32 v251, 0")
    for k, nm in enumerate(fs_used[role]):
        a(f"s_mul_i32 s{FS0+2*k+1}, s{FS0+2*k+1}, 100")
        a(f"v_writelane_b32 v250, s{FS0+2*k+1}, {k}")
    sys.stderr.write(role + ": " + " ".join(f"{k}={nm}" for k, nm in enumerate(fs_used[role])) + "\n")
pend = []
def stamp(i):
    if not STAMP or P["FINE"]: return
    r = 72 + 2 * len(pend); assert r <= 98
    pend.append(i)
    a(f"s_memrealtime s[{r}:{r+1}]")
def stamp_flush():
    if not STAMP or P["FINE"]: return
    a.wait_lg_all()
    for k, i in enumerate(pend):
        a(f"v_writelane_b32 v250, s{72+2*k}, {i}")
        a(f"v_writelane_b32 v251, s{73+2*k}, {i}")
    pend.clear()
def xlane_reduce(op, r, t):
    return [f"v_mov_b32 v{t}, v{r}", f"v_permlane32_swap_b32 v{r}, v{t}", f"{op} v{r}, v{r}, v{t}",
            f"v_mov_b32 v{t}, v{r}", f"v_permlane16_swap_b32 v{r}, v{t}", f"{op} v{r}, v{r}, v{t}"]
def throttle(D):
    if len(a.vm) >= D:
        n = D - 1
        a(f"s_waitcnt vmcnt({n})")
        a.vm = a.vm[len(a.vm) - n:] if n else []
def sentinel_max(lo, dst, tmp):
    a(f"v_max3_u32 v{dst}, v{lo}, v{lo+1}, v{lo+2}\nv_max3_u32 v{tmp}, v{lo+3}, v{lo+4}, v{lo+5}")
    for r in range(lo + 6, lo + 30, 4):
        a(f"v_max3_u32 v{dst}, v{dst}, v{r}, v{r+1}\nv_max3_u32 v{tmp}, v{tmp}, v{r+2}, v{r+3}")
    a(f"v_max3_u32 v{dst}, v{dst}, v{lo+30}, v{lo+31}\nv_max_u32 v{dst}, v{dst}, v{tmp}")

if STAMP: a("s_memrealtime s[100:101]")
if P["MAP"] == 0:
    a("s_lshr_b32 s5, s2, 3")
    a("s_add_u32 s6, s2, s5")
    a("s_bfe_u32 s4, s6, 0x10002")
else:
    a("s_lshr_b32 s4, s2, 7")
    a("s_and_b32 s4, s4, 1")
    a("s_lshr_b32 s6, s2, 3")
    a(f"s_lshr_b32 s5, s2, {4 if P['MAP'] == 1 else 5}\ns_add_u32 s5, s5, s2\ns_and_b32 s5, s5, 7\ns_lshr_b32 s54, s2, 2\ns_and_b32 s54, s54, 24\ns_or_b32 s5, s5, s54")
a("s_mul_i32 s7, s4, 48")
a("s_load_dwordx8 s[36:43], s[0:1], s7 offset:0")
a("s_cmp_ge_u32 s2, 256")
a("s_cbranch_scc1 L_end")
a("v_lshrrev_b32 v4, 6, v0")
a("s_and_b32 s6, s6, 3")
a("v_readfirstlane_b32 s3, v4")
a("v_and_b32 v0, 63, v0")
a("v_and_b32 v1, 15, v0")
a("v_lshrrev_b32 v2, 4, v0")
a("s_mov_b32 s10, 1280\ns_mov_b32 s11, 0x20000")
a("s_mov_b32 s14, 5242880\ns_mov_b32 s15, 0x20000")
a("s_lshl_b32 s57, s5, 8")
a("s_mul_i32 s54, s6, 160\ns_mul_i32 s55, s3, 40\ns_add_u32 s54, s54, s55")
a("s_lshl_b32 s58, s54, 1\ns_lshl_b32 s59, s54, 13\ns_add_u32 s59, s59, s57")
a("v_mul_u32_u24 v3, 81920, v2\nv_lshl_add_u32 v3, v1, 4, v3\nv_mul_u32_u24 v4, 20, v2")
a("s_waitcnt lgkmcnt(0)")
a("s_mov_b32 s12, s40\ns_mov_b32 s13, s41\ns_mov_b32 s8, s36\ns_mov_b32 s9, s37")
NQ = 10
WQ0 = 152; ACC = 120; TMP = 128; XF = 204
def wq_load(i):
    a(f"buffer_load_dwordx4 v[{WQ0+4*i}:{WQ0+3+4*i}], v3, s[12:15], s59 offen{NT}", f"wq{i}")
    if i < NQ - 1: a("s_add_u32 s59, s59, 8192")
D1 = P["D1"]
stamp(11)
wq_load(0)
a("buffer_load_dwordx4 v[192:195], v4, s[8:11], s58 offen", "x")
a("buffer_load_dword v196, v4, s[8:11], s58 offen offset:16", "x")
for i in range(1, D1): wq_load(i)
a("s_load_dwordx4 s[20:23], s[0:1], s7 offset:32")
a("s_load_dwordx4 s[32:35], s[0:1], 96")
a("s_load_dwordx2 s[28:29], s[0:1], 112")
if P["PF"]:
    a("s_getpc_b64 s[64:65]")
    a("L_pc:")
    a(f"s_sub_u32 s64, s64, L_pc-{NAME}\ns_subb_u32 s65, s65, 0")
    a("s_lshr_b32 s55, s2, 3\ns_lshl_b32 s55, s55, 2\ns_add_u32 s55, s55, s3\ns_lshl_b32 s55, s55, 7")
    a(f"s_min_u32 s55, s55, L_end-{NAME}-64")
if STAMP:
    a("v_mov_b32 v250, 0\nv_mov_b32 v251, 0")
    a("v_writelane_b32 v250, s100, 0\nv_writelane_b32 v251, s101, 0")
a("v_mov_b32 v112, -1\nv_mov_b32 v113, -1\nv_mov_b32 v114, -1\nv_mov_b32 v115, -1")
a("v_lshlrev_b32 v6, 4, v0")
a("s_lshl_b32 s61, s4, 5\ns_add_u32 s61, s61, s5")
a(f"s_lshl_b32 s56, s4, 7\ns_add_u32 s56, s56, {EP}")
a("s_mov_b32 s16, s42\ns_mov_b32 s17, s43\ns_mov_b32 s18, 4194304\ns_mov_b32 s19, 0x20000")
a(f"s_mov_b32 s30, {WSSZ}\ns_mov_b32 s31, 0x20000")
a("v_lshlrev_b32 v5, 13, v2\nv_lshrrev_b32 v139, 1, v2\nv_xor_b32 v139, v139, v1")
a("s_lshl_b32 s54, s6, 7\ns_lshl_b32 s44, s3, 5\ns_add_u32 s54, s54, s44\ns_lshl_b32 s54, s54, 13\ns_add_u32 s44, s54, s57")
a(f"s_lshl_b32 s45, s3, 13\ns_add_u32 s45, s45, {WUK}")
a("v_lshlrev_b32 v138, 9, v1\nv_add_u32 v138, s45, v138")
for s in range(4):
    a(f"v_add_u32 v137, {4*s}, v2\nv_xor_b32 v137, v137, v1\nv_lshl_add_u32 v{144+s}, v137, 4, v138")
uk_n = [0]
def wuk_load():
    k = uk_n[0]; uk_n[0] += 1
    a(f"v_xor_b32 v138, {2*k}, v139\ns_mov_b32 m0, s45\nv_lshl_add_u32 v138, v138, 4, v5\ns_add_u32 s45, s45, 1024")
    a(f"buffer_load_dwordx4 v138, s[16:19], s44 offen{NT} lds", f"wuk{k}")
    a("s_add_u32 s44, s44, 32768")
for r in range(ACC, ACC + 8): a(f"v_mov_b32 v{r}, 0")
a("s_waitcnt lgkmcnt(0)")
a("s_load_dwordx2 s[52:53], s[28:29], s56")
if P["PF"]:
    a("s_load_dword s66, s[64:65], s55 offset:0")
    a("s_load_dword s67, s[64:65], s55 offset:64")
a("s_mov_b32 s24, s22\ns_mov_b32 s25, s23\ns_mov_b32 s26, 5242880\ns_mov_b32 s27, 0x20000")
a("s_mov_b32 s22, 4194304\ns_mov_b32 s23, 0x20000")
a("s_mov_b32 s50, s34\ns_mov_b32 s51, s35\ns_mov_b32 s34, 2560\ns_mov_b32 s35, 0x20000")
vm_first = list(a.vm)
a("s_lshl_b32 s63, s6, 3\ns_or_b32 s63, s63, s5")
a("s_cmp_lt_u32 s6, 2\ns_cbranch_scc1 L_setC")
a("s_mov_b32 s20, s38\ns_mov_b32 s21, s39")
a("s_lshl_b32 s46, s5, 1\ns_add_u32 s46, s46, s6\ns_sub_u32 s46, s46, 2")
a(f"s_mul_i32 s40, s3, {16*ROW}\ns_add_u32 s40, s40, {IMG}")
a("s_lshl_b32 s41, s46, 16\ns_lshl_b32 s54, s3, 14\ns_add_u32 s41, s41, s54")
a(f"s_mov_b32 s42, {ROW}\ns_mov_b32 s43, 1024")
for k in range(4): a(f"v_mov_b32 v{140+k}, v6")
a("s_branch L_set_done")
a("L_setC:")
a("s_lshl_b32 s54, s61, 1\ns_add_u32 s54, s54, s6\ns_mul_i32 s62, s54, 2560")
a(f"s_add_u32 s62, s62, {OP}")
a("s_mul_i32 s55, s3, 640\ns_add_u32 s54, s62, s55")
setexec(0xffffffffff)
a("buffer_store_dwordx4 v[112:115], v6, s[28:31], s54 offen sc1")
setexec(-1)
a(f"s_lshl_b32 s40, s3, 14\ns_add_u32 s40, s40, {WUV}")
a("s_lshl_b32 s41, s3, 20\ns_add_u32 s41, s41, s57\ns_lshl_b32 s54, s6, 7\ns_add_u32 s41, s41, s54")
a("s_mov_b32 s42, 1024\ns_mov_b32 s43, 65536")
a("v_and_b32 v7, 7, v0\nv_lshrrev_b32 v8, 3, v0\nv_lshlrev_b32 v8, 13, v8")
for k in range(4):
    a(f"v_xor_b32 v9, {2*k}, v7\nv_lshl_add_u32 v{140+k}, v9, 4, v8")
a("s_cmp_ge_u32 s63, 8\ns_cbranch_scc1 L_set_done")
a("s_lshl_b32 s54, s4, 3\ns_add_u32 s54, s54, s5\ns_lshl_b32 s54, s54, 12")
a("s_lshl_b32 s55, s3, 10\ns_add_u32 s54, s54, s55")
if QA: a(f"s_add_u32 s54, s54, {QA}")
a("buffer_store_dwordx4 v[112:115], v6, s[28:31], s54 offen sc1")
a("L_set_done:")
a.vm = list(vm_first)
old_ops = set(vm_first)
s3_n = [0]
def seg3_dma():
    k = s3_n[0]; s3_n[0] += 1
    a("s_mov_b32 m0, s40")
    a("s_add_u32 s40, s40, s42")
    a(f"buffer_load_dwordx4 v{140+((k>>1)&3)}, s[20:23], s41 offen{NT} lds", f"uv{k}")
    a("s_add_u32 s41, s41, s43")

nq = D1
for i in range(NQ):
    a.wait_vm("x" if i == 0 else f"wq{i}")
    if i == 0: stamp(12)
    if i == 5: stamp(13)
    if i == 9: stamp(14)
    if nq < NQ: wq_load(nq); nq += 1
    elif uk_n[0] < 8 and i < NQ - P["TAP"]: wuk_load()
    if i == 0:
        for t in range(5):
            a(f"v_lshlrev_b32 v{XF+2*t}, 16, v{192+t}")
            a(f"v_and_b32 v{XF+1+2*t}, 0xffff0000, v{192+t}")
    if i == 3:
        a("s_cmp_ge_u32 s63, 8\ns_cbranch_scc1 L_noclr")
        a(f"s_waitcnt vmcnt({len([t for t in a.vm if t not in old_ops])})")
        a("s_barrier")
        a("s_cmp_lg_u32 s3, 0\ns_cbranch_scc1 L_noclr")
        a("v_mov_b32 v136, 0\nv_mov_b32 v137, 1")
        setexec(1)
        sv = list(a.vm)
        a("global_atomic_add v136, v137, s[50:51] sc1")
        a.vm = sv
        setexec(-1)
        a("L_noclr:")
    xp = XF + (i & ~1)
    sel = "op_sel_hi:[1,0,1]" if i % 2 == 0 else "op_sel:[0,1,0] op_sel_hi:[1,1,1]"
    for k in range(4):
        w = WQ0 + 4 * i + k; t = TMP + 2 * k
        a(f"v_lshlrev_b32 v{t}, 16, v{w}")
        a(f"v_and_b32 v{t+1}, 0xffff0000, v{w}")
    for k in range(4):
        t = TMP + 2 * k
        a(f"v_pk_fma_f32 v[{ACC+2*k}:{ACC+1+2*k}], v[{t}:{t+1}], v[{xp}:{xp+1}], v[{ACC+2*k}:{ACC+1+2*k}] {sel}")
for k in range(4): a(f"v_permlane32_swap_b32 v{ACC+2*k}, v{ACC+1+2*k}")
a("v_and_b32 v136, 1, v2\nv_lshlrev_b32 v136, 1, v136\nv_lshrrev_b32 v137, 1, v2\nv_or_b32 v136, v136, v137")
for k in range(4): a(f"v_add_f32 v{ACC+2*k}, v{ACC+2*k}, v{ACC+1+2*k}")
a("v_lshl_add_u32 v136, v1, 3, v136\nv_lshlrev_b32 v136, 2, v136")
a(f"v_permlane16_swap_b32 v{ACC}, v{ACC+2}")
a(f"v_permlane16_swap_b32 v{ACC+4}, v{ACC+6}")
a("s_lshl_b32 s54, s3, 9")
a("v_add_u32 v136, s54, v136")
a(f"v_add_f32 v{ACC}, v{ACC}, v{ACC+2}")
a(f"v_add_f32 v{ACC+4}, v{ACC+4}, v{ACC+6}")
a.wait_lg_all()
a("s_add_u32 s52, s52, 1")
a(f"ds_write_b32 v136, v{ACC} offset:{QP}")
a(f"ds_write_b32 v136, v{ACC+4} offset:{QP+16}")
if not P["TAP"]:
    while uk_n[0] < 8: wuk_load()
a("v_lshlrev_b32 v136, 3, v0")
a("v_mov_b32 v106, s52\nv_mov_b32 v107, s53")
a(f"s_lshl_b32 s60, s61, 12\ns_add_u32 s60, s60, {QX}\ns_lshl_b32 s54, s6, 10\ns_add_u32 s54, s54, s60")
a.wait_lg_all()
a("s_barrier")
stamp(2)
vm_A = list(a.vm)
NE = P["NE"]; NEB = max(P["NEB"], NE)
a("s_cmp_lg_u32 s3, 0\ns_cbranch_scc1 L_others")
for w in range(4):
    a(f"ds_read_b64 v[{112+2*w}:{113+2*w}], v136 offset:{QP+512*w}")
a("s_mov_b32 s55, 0")
a("v_mov_b32 v9, 0")
a.wait_lg_all()
a("v_pk_add_f32 v[112:113], v[112:113], v[114:115]")
a("v_pk_add_f32 v[108:109], v[116:117], v[118:119]")
a("v_pk_add_f32 v[104:105], v[112:113], v[108:109]")
a("buffer_store_dwordx4 v[104:107], v6, s[28:31], s54 offen sc1")
uk_mark = uk_n[0]
if P["TAP"]:
    a("s_barrier")
    while uk_n[0] < 8: wuk_load()
stamp(3)
a("L_qs:")
for jj in range(4):
    a(f"s_load_dwordx2 s[{64+2*jj}:{65+2*jj}], s[28:29], s60 offset:{jj*1024+1016} glc")
a("s_add_u32 s55, s55, 1")
a("s_waitcnt lgkmcnt(0)")
for jj in range(4): a(f"s_xor_b64 s[{64+2*jj}:{65+2*jj}], s[{64+2*jj}:{65+2*jj}], s[52:53]")
a("s_or_b64 s[64:65], s[64:65], s[66:67]\ns_or_b64 s[68:69], s[68:69], s[70:71]")
a(f"s_cmp_ge_u32 s55, {SPIN}\ns_cbranch_scc1 L_qg")
a("s_or_b64 s[64:65], s[64:65], s[68:69]\ns_cbranch_scc1 L_qs")
a("L_qg:")
def qgather():
    for jj in range(4):
        a(f"buffer_load_dwordx4 v[{120+4*jj}:{123+4*jj}], v6, s[28:31], s60 offen offset:{1024*jj} sc1")
    a("global_load_dword v136, v9, s[50:51] sc1")
qgather()
stamp(1)
a("s_barrier")
def early_seg3(lbl):
    CPF = P["CPF"]
    if CPF:
        a(f"s_cmp_lt_u32 s6, 2\ns_cbranch_scc0 {lbl}p")
        a("s_mov_b32 s8, s38\ns_mov_b32 s9, s39\ns_mov_b32 s10, 4194304")
        a(f"s_lshl_b32 s54, s5, 1\ns_add_u32 s54, s54, s6\ns_lshl_b32 s54, s54, 16\ns_lshl_b32 s58, s3, 14\ns_add_u32 s54, s54, s58\ns_add_u32 s54, s54, {(16-CPF)*1024}")
        for k in range(CPF):
            if k and k % 4 == 0: a("s_add_u32 s54, s54, 4096")
            a(f"buffer_load_dwordx4 v[{152+4*k}:{155+4*k}], v6, s[8:11], s54 offen offset:{(k%4)*1024}{' nt' if P['CPN'] else ''}")
        while s3_n[0] < NE: seg3_dma()
        a(f"s_waitcnt vmcnt({NE+CPF})")
        a(f"s_branch {lbl}b")
        a(f"{lbl}p:")
        s3_n[0] = P["NP"] if lbl == "L_e1" else 0
        while s3_n[0] < NEB: seg3_dma()
        a(f"s_waitcnt vmcnt({NEB})")
        a(f"{lbl}b:")
        return
    while s3_n[0] < NE: seg3_dma()
    if NEB > NE:
        a(f"s_cmp_lt_u32 s6, 2\ns_cbranch_scc1 {lbl}a")
        for k in range(NE, NEB): seg3_dma()
        a(f"s_waitcnt vmcnt({NEB})")
        a(f"{lbl}a:")
    a(f"s_cmp_lt_u32 s6, 2\ns_cbranch_scc0 {lbl}b" if NEB > NE else "")
    a(f"s_waitcnt vmcnt({NE})")
    if NEB > NE: a(f"{lbl}b:")
early_seg3("L_e0")
a("L_qg_chk:")
a(f"v_min_u32 v136, {NCLR}, v136\nv_xor_b32 v136, {NCLR}, v136")
for jj in range(4):
    a(f"v_xor_b32 v{122+4*jj}, s52, v{122+4*jj}\nv_xor_b32 v{123+4*jj}, s53, v{123+4*jj}")
    a(f"v_or3_b32 v136, v136, v{122+4*jj}, v{123+4*jj}")
a("v_cmp_ne_u32 vcc, 0, v136")
a("s_cbranch_vccz L_qg_ok")
a("s_add_u32 s55, s55, 1")
a(f"s_cmp_ge_u32 s55, {SPIN}\ns_cbranch_scc1 L_qg_ok")
qgather()
a("s_waitcnt vmcnt(0)")
a("s_branch L_qg_chk")
a("L_qg_ok:")
a("v_pk_add_f32 v[120:121], v[120:121], v[124:125]")
a("v_pk_add_f32 v[128:129], v[128:129], v[132:133]")
a("v_pk_add_f32 v[120:121], v[120:121], v[128:129]")
a("v_lshlrev_b32 v9, 2, v0")
a("v_cvt_pk_bf16_f32 v120, v120, v121")
a(f"ds_write_b32 v9, v120 offset:{QB}")
a("s_branch L_qx_done")
a("L_others:")
if STAMP and not P["FINE"]:
    a("s_nop 0")
s3_n[0] = 0
if P["TAP"]:
    a("s_barrier")
    uk_n[0] = uk_mark
    while uk_n[0] < 8: wuk_load()
uk_left = len([t for t in vm_A if t.startswith("wuk")])
for k in range(P["NP"]):
    a(f"s_waitcnt vmcnt({P['NP'] - 1})")
    seg3_dma()
a("s_barrier")
early_seg3("L_e1")
a("L_qx_done:")
a.vm = [f"uv{k}" for k in range(NE)]; a.lg = []
for s in range(4):
    for t in range(2):
        r = 32 + (t * 4 + s) * 4
        a(f"ds_read_b128 v[{r}:{r+3}], v{144+s} offset:{t*256}")
a("v_lshlrev_b32 v9, 4, v2")
a(f"s_mov_b32 s54, 0x{f2u(SCALE):08x}")
a("s_lshr_b32 s60, s61, 4\ns_lshl_b32 s60, s60, 4\ns_lshl_b32 s55, s6, 2\ns_add_u32 s55, s55, s3\ns_add_u32 s60, s60, s55\ns_lshl_b32 s60, s60, 10")
a("s_and_b32 s55, s5, 15\ns_lshl_b32 s55, s55, 6\ns_add_u32 s60, s60, s55")
if QA: a(f"s_add_u32 s60, s60, {QA}")
a("v_lshlrev_b32 v8, 2, v0")
a.wait_lg_all()
a("s_barrier")
stamp(4)
for s in range(4):
    a(f"ds_read_b128 v[{120+4*s}:{123+4*s}], v9 offset:{QB+64*s}", f"q{s}")
for s in range(4):
    a.wait_lg(f"q{s}")
    for t in range(2):
        r = 32 + (t * 4 + s) * 4
        c = "0" if s == 0 else f"v[{64+4*t}:{67+4*t}]"
        a(f"v_mfma_f32_16x16x32_bf16 v[{64+4*t}:{67+4*t}], v[{120+4*s}:{123+4*s}], v[{r}:{r+3}], {c}")
a("v_mul_f32 v64, s54, v64\nv_mul_f32 v68, s54, v68")
a("v_cvt_pk_bf16_f32 v64, v64, v68")
a("v_min_u32 v64, -2, v64")
setexec(0xffff)
a("buffer_store_dword v64, v8, s[28:31], s60 offen sc1", "qa")
setexec(-1)
stamp(5)
vm_role = list(a.vm); pend_role = list(pend)
a("s_cmp_lt_u32 s6, 2\ns_cbranch_scc1 L_roleC")

s3_n[0] = NEB
while s3_n[0] < 16: seg3_dma()
a("s_and_b32 s47, s3, 1\ns_lshr_b32 s48, s3, 1")
a("v_lshlrev_b32 v5, 6, v1\nv_lshl_add_u32 v5, v2, 4, v5")
a("s_lshl_b32 s54, s4, 15\ns_lshl_b32 s55, s47, 14\ns_add_u32 s54, s54, s55\ns_lshl_b32 s49, s48, 13\ns_add_u32 s60, s54, s49\ns_lshl_b32 s49, s48, 9")
if QA: a(f"s_add_u32 s60, s60, {QA}")
a("s_add_u32 s62, s60, 4096")
a(f"s_add_u32 s54, s49, {IMG}")
a(f"v_mul_u32_u24 v7, {ROW}, v1\nv_lshl_add_u32 v7, v2, 4, v7\nv_add_u32 v7, s54, v7")
a(f"v_lshrrev_b32 v8, 2, v0\nv_mul_u32_u24 v8, {ROW}, v8\nv_and_b32 v10, 3, v0\nv_lshl_add_u32 v8, v10, 3, v8\nv_add_u32 v8, s54, v8")
a(f"s_lshl_b32 s54, s3, 12\ns_add_u32 s54, s54, {XB}\nv_add_u32 v11, s54, v6")
a(f"s_xor_b32 s54, s3, 2\ns_lshl_b32 s54, s54, 12\ns_add_u32 s54, s54, {XB}\nv_add_u32 v12, s54, v6")
a("v_lshlrev_b32 v13, 18, v2\nv_lshl_add_u32 v13, v1, 4, v13\nv_lshlrev_b32 v14, 10, v1")
a("s_lshl_b32 s54, s4, 5\ns_lshl_b32 s55, s47, 4\ns_add_u32 s54, s54, s55\ns_lshl_b32 s54, s54, 6\ns_add_u32 s54, s54, s46")
a(f"s_lshl_b32 s64, s54, 10\ns_add_u32 s64, s64, s49\ns_add_u32 s64, s64, {PO}")
a("s_add_u32 s65, s64, 65536\ns_add_u32 s66, s65, 65536\ns_add_u32 s67, s66, 65536")
if P["STV"]:
    a(f"s_lshl_b32 s68, s4, 6\ns_add_u32 s68, s68, s46\ns_lshl_b32 s68, s68, 9\ns_lshl_b32 s55, s47, 8\ns_add_u32 s68, s68, s55\ns_add_u32 s68, s68, {ST}")
    a("v_mov_b32 v14, v6")
else:
    a(f"s_mul_i32 s68, s54, {P['STS']}\ns_add_u32 s68, s68, {ST}")
    a(f"v_mul_u32_u24 v14, {64*P['STS']}, v1")
a("s_mov_b32 s55, 0")
def qloads():
    for s in range(8):
        a(f"buffer_load_dwordx4 v[{32+4*s}:{35+4*s}], v5, s[28:31], s{60 if s < 4 else 62} offen offset:{1024*(s&3)} sc1")
qloads()
a("s_waitcnt vmcnt(0)")
stamp(6)
sentinel_max(32, 10, 108)
a("v_cmp_eq_u32 vcc, -1, v10")
a("s_mov_b64 s[58:59], vcc")
a("s_cbranch_vccz L_qa_first_ok")
a("s_mov_b64 exec, vcc")
qloads()
setexec(-1)
a("L_qa_first_ok:")
a("s_barrier")
for s in range(8):
    for t in range(4):
        r = (t * 8 + s) * 4
        a(f"ds_read_b128 a[{r}:{r+3}], v7 offset:{t*16*ROW + s*64}", f"S{s}_{t}")
pv = [(T, s2, u) for s2 in range(2) for T in range(16) for u in range(2)]
def pv_read():
    T, s2, u = pv.pop(0)
    rr = 128 + (T * 2 + s2) * 4 + 2 * u
    a(f"ds_read_b64_tr_b16 a[{rr}:{rr+1}], v8 offset:{(32*s2+16*u)*ROW + T*32}")
if not P["PVI"]:
    while pv: pv_read()
a("s_cmp_eq_u64 s[58:59], 0\ns_cbranch_scc1 L_qa_ok")
a("s_mov_b64 exec, s[58:59]")
a("L_qa_chk:")
a("s_waitcnt vmcnt(0)")
sentinel_max(32, 10, 108)
a("v_cmp_eq_u32 vcc, -1, v10")
a("s_cbranch_vccz L_qa_ok")
a("s_add_u32 s55, s55, 1")
a(f"s_cmp_ge_u32 s55, {SPIN}\ns_cbranch_scc1 L_qa_ok")
a("s_mov_b64 exec, vcc")
qloads()
a("s_branch L_qa_chk")
a("L_qa_ok:")
setexec(-1)
a.vm = []
stamp(7)
fs("B", "qok")
fills = []
if P["EH"]:
    a("v_mov_b32 v112, -1\nv_mov_b32 v113, -1\nv_mov_b32 v114, -1\nv_mov_b32 v115, -1")
    fills = [f"buffer_store_dwordx4 v[112:115], v13, s[28:31], s{64+r} offen offset:{Q*256} sc1" for Q in range(2) for r in range(4)]
for s in range(8):
    for t in range(4):
        r = (t * 8 + s) * 4
        c = "0" if s == 0 else f"v[{64+4*t}:{67+4*t}]"
        a.wait_lg(f"S{s}_{t}")
        a(f"v_mfma_f32_16x16x32_bf16 v[{64+4*t}:{67+4*t}], a[{r}:{r+3}], v[{32+4*s}:{35+4*s}], {c}")
        for _ in range(3 if (s * 4 + t) % 3 == 0 else 2):
            if pv: pv_read()
        if t == 0 and fills: a(fills.pop(0), "fill")
fs("B", "Sissued")
for t in range(4):
    a(f"ds_write_b128 v11, v[{64+4*t}:{67+4*t}] offset:{t*1024}")
a.wait_lg_all()
fs("B", "xw")
a("s_barrier")
fs("B", "bar")
for t in range(4):
    a(f"ds_read_b128 v[{80+4*t}:{83+4*t}], v12 offset:{t*1024}", f"x{t}")
for t in range(4):
    a.wait_lg(f"x{t}")
    for k in range(4):
        a(f"v_add_f32 v{64+4*t+k}, v{64+4*t+k}, v{80+4*t+k}")
    if t == 0: a("v_max3_f32 v104, v64, v65, v66\nv_mov_b32 v105, v67")
    else: a(f"v_max3_f32 v104, v104, v{64+4*t}, v{65+4*t}\nv_max3_f32 v105, v105, v{66+4*t}, v{67+4*t}")
fs("B", "added")
a("v_max_f32 v104, v104, v105")
for x in xlane_reduce("v_max_f32", 104, 108): a(x)
for r in range(64, 72): a(f"v_sub_f32 v{r}, v{r}, v104")
for r in range(64, 72): a(f"v_exp_f32 v{r}, v{r}")
for k in range(4): a(f"v_cvt_pk_bf16_f32 v{96+k}, v{64+2*k}, v{65+2*k}")
fs("B", "P0")
fill = []
for r in range(72, 80): fill += [f"v_sub_f32 v{r}, v{r}, v104"]
for r in range(72, 80): fill += [f"v_exp_f32 v{r}, v{r}"]
for k in range(4, 8): fill += [f"v_cvt_pk_bf16_f32 v{96+k}, v{64+2*k}, v{65+2*k}"]
for T in range(16):
    rr = 128 + (T * 2) * 4
    a(f"v_mfma_f32_16x16x32_bf16 v[{128+4*T}:{131+4*T}], v[96:99], a[{rr}:{rr+3}], 0")
    budget = 8
    while fill and budget > 0:
        x = fill.pop(0); a(x); budget -= 8 if "exp" in x else 4
for x in fill: a(x)
fs("B", "PV0")
sums = [f"v_add_f32 v{64+k}, v{64+k}, v{72+k}" for k in range(8)] + [f"v_add_f32 v{64+k}, v{64+k}, v{68+k}" for k in range(4)] + \
       ["v_add_f32 v64, v64, v65", "v_add_f32 v66, v66, v67", "v_add_f32 v105, v64, v66"] + xlane_reduce("v_add_f32", 105, 108)
def pack(Q):
    L = []
    for r in range(4):
        d = 192 + (Q * 4 + r) * 4
        for k in range(4):
            T = 8 * Q + 2 * k
            L.append(f"v_cvt_pk_bf16_f32 v{d+k}, v{128+4*T+r}, v{128+4*(T+1)+r}")
        L.append(f"buffer_store_dwordx4 v[{d}:{d+3}], v13, s[28:31], s{64+r} offen offset:{Q*256} sc1")
    return L
def stat_store():
    if P["EH"]:
        a.wait_vm("fill")
    else:
        a.wait_vm_all()
    fs("B", "vm0")
    a("s_barrier")
    a("s_cmp_lg_u32 s48, 0\ns_cbranch_scc1 L_nostat")
    setexec(0xffff)
    sv = list(a.vm)
    a("buffer_store_dwordx4 v[104:107], v14, s[28:31], s68 offen sc1")
    a.vm = sv
    setexec(-1)
    a("L_nostat:")
if P["EH"] and P["HP"] < 2:
    fill = list(sums); sums = []
else:
    fill = sums[:16]; sums = sums[16:]
for T in range(16):
    rr = 128 + (T * 2 + 1) * 4
    a(f"v_mfma_f32_16x16x32_bf16 v[{128+4*T}:{131+4*T}], v[100:103], a[{rr}:{rr+3}], v[{128+4*T}:{131+4*T}]")
    if T == 9 and not (P["EH"] and P["HP"] == 0): fill += pack(0)
    for _ in range(2):
        if fill: a(fill.pop(0))
fs("B", "PV1")
for x in fill: a(x)
if P["EH"] and P["HP"] == 0:
    stat_store()
    for x in pack(0): a(x)
if P["EH"] and P["HP"] == 1: stat_store()
for x in pack(1): a(x)
fs("B", "stored")
for x in sums: a(x)
stamp(8)
if not P["EH"] or P["HP"] == 2: stat_store()
fs_flush("B")
stamp(9)
stamp_flush()
a("s_cmp_lg_u32 s3, 0\ns_cbranch_scc1 L_fin")
a("s_cmp_ge_u32 s46, 20\ns_cbranch_scc1 L_fin")
a("v_lshrrev_b32 v7, 3, v0\nv_mul_u32_u24 v7, 2560, v7\nv_and_b32 v8, 7, v0\nv_lshl_add_u32 v7, v8, 4, v7")
a("s_mul_i32 s54, s4, 163840\ns_lshl_b32 s55, s46, 7\ns_add_u32 s54, s54, s55")
a(f"s_add_u32 s64, s54, {OP}")
for i in range(1, 8): a(f"s_add_u32 s{64+i}, s{63+i}, 20480")
a("s_mul_i32 s54, s4, 1280\ns_lshl_b32 s55, s46, 6\ns_add_u32 s54, s54, s55")
a("v_lshlrev_b32 v9, 3, v0")
a("s_mov_b32 s55, 0")
a("L_d_poll:")
for i in range(8):
    a(f"buffer_load_dwordx4 v[{32+4*i}:{35+4*i}], v7, s[28:31], s{64+i} offen sc1")
a("s_add_u32 s55, s55, 1")
a("s_waitcnt vmcnt(0)")
sentinel_max(32, 10, 108)
a("v_cmp_eq_u32 vcc, -1, v10")
a(f"s_cmp_ge_u32 s55, {SPIN}\ns_cbranch_scc1 L_d_ok")
a("s_cbranch_vccnz L_d_poll")
a("L_d_ok:")
for st, rng in ((16, range(32, 48)), (8, range(32, 40)), (4, range(32, 36))):
    for r in rng: a(f"v_add_f32 v{r}, v{r}, v{r+st}")
for k in range(4):
    a(f"v_add_f32_dpp v{36+k}, v{32+k}, v{32+k} row_ror:8 row_mask:0xf bank_mask:0xf")
for k in range(4): a(f"v_mov_b32 v{40+k}, v{36+k}")
for k in range(4): a(f"v_permlane16_swap_b32 v{36+k}, v{40+k}")
for k in range(4): a(f"v_add_f32 v{36+k}, v{36+k}, v{40+k}")
for k in range(4): a(f"v_mov_b32 v{40+k}, v{36+k}")
for k in range(4): a(f"v_permlane32_swap_b32 v{36+k}, v{40+k}")
for k in range(4): a(f"v_add_f32 v{36+k}, v{36+k}, v{40+k}")
a("v_cvt_pk_bf16_f32 v36, v36, v37\nv_cvt_pk_bf16_f32 v37, v38, v39")
setexec(0xff)
a("buffer_store_dwordx2 v[36:37], v9, s[32:35], s54 offen")
a("s_cmp_lg_u32 s46, 0\ns_cbranch_scc1 L_noep")
setexec(1)
a("buffer_store_dwordx2 v[106:107], v9, s[28:31], s56 offen sc1")
a("L_noep:")
setexec(-1)
stamp(10)
stamp_flush()
a("s_branch L_fin")

a("L_roleC:")
a.vm = vm_role; a.lg = []; a.hist = []
pend[:] = pend_role
s3_n[0] = NE
a("s_and_b32 s54, s3, 1\ns_lshl_b32 s54, s54, 3")
a("v_lshl_add_u32 v7, v2, 1, s54\nv_xor_b32 v7, v7, v1\nv_lshlrev_b32 v7, 4, v7")
a("v_mul_u32_u24 v8, 1280, v2\nv_add_u32 v7, v7, v8")
a("s_lshl_b32 s54, s5, 7\ns_lshl_b32 s55, s6, 6\ns_add_u32 s54, s54, s55\ns_lshl_b32 s55, s3, 2\ns_add_u32 s54, s54, s55\ns_mul_i32 s47, s54, 1280")
a(f"s_mul_i32 s46, s3, 5120\ns_add_u32 s46, s46, {WO}")
a("v_lshrrev_b32 v8, 2, v1\nv_and_b32 v10, 3, v0\nv_and_b32 v16, 1, v2\nv_and_b32 v17, 1, v10\nv_lshrrev_b32 v18, 1, v10")
a("v_lshlrev_b32 v19, 1, v8")
a("v_lshrrev_b32 v20, 1, v2\nv_lshl_add_u32 v20, v16, 6, v20\nv_lshl_add_u32 v20, v8, 4, v20")
a(f"s_lshl_b32 s54, s3, 14\ns_add_u32 s54, s54, {WUV}")
a("v_lshlrev_b32 v20, 7, v20\nv_lshl_add_u32 v20, v17, 3, v20\nv_add_u32 v20, s54, v20")
for t in range(4):
    a(f"v_add_u32 v21, {2*t}, v18\nv_xor_b32 v21, v21, v19\nv_lshl_add_u32 v{24+t}, v21, 4, v20")
a("v_lshlrev_b32 v13, 3, v16\nv_lshl_add_u32 v13, v8, 1, v13")
a("s_lshl_b32 s54, s3, 2\nv_add_u32 v14, s54, v18")
a("v_xor_b32 v21, v14, v13\nv_add_u32 v14, 2, v14\nv_xor_b32 v14, v14, v13")
a(f"v_mul_u32_u24 v22, 5120, v2\nv_lshl_add_u32 v22, v8, 8, v22\nv_lshl_add_u32 v22, v17, 3, v22\nv_add_u32 v22, {WO}, v22")
a("v_lshl_add_u32 v12, v21, 4, v22\nv_lshl_add_u32 v13, v14, 4, v22")
a("v_add_u32 v14, 40960, v12\nv_add_u32 v11, 40960, v13")
WOA = {(0, 0): 12, (1, 0): 13, (0, 1): 14, (1, 1): 11}
a(f"v_lshrrev_b32 v23, 2, v0\nv_mul_u32_u24 v23, {ROW}, v23\nv_lshl_add_u32 v23, v10, 3, v23")
a(f"s_lshl_b32 s54, s3, 8\ns_add_u32 s54, s54, {GAT}\nv_add_u32 v23, s54, v23")
a("v_and_b32 v28, 32, v0\nv_lshl_add_u32 v28, v8, 3, v28\nv_lshl_add_u32 v28, v16, 2, v28\nv_add_u32 v28, v28, v10")
a("s_lshl_b32 s54, s3, 7\nv_lshl_add_u32 v28, v28, 1, s54\nv_lshl_add_u32 v29, v2, 4, s54")
if P["DSA"]:
    a("s_lshl_b32 s55, s3, 7\nv_subrev_u32 v31, s55, v28\nv_lshlrev_b32 v31, 1, v31\nv_lshlrev_b32 v30, 5, v2")
    a(f"v_mov_b32 v15, 0\nds_write_b32 v31, v15 offset:{R3}")
else:
    a("v_lshlrev_b32 v30, 4, v0\ns_lshl_b32 s55, s3, 2\nv_add_u32 v31, s55, v30")
a("s_lshl_b32 s55, s3, 7\ns_add_u32 s62, s62, s55")
a("v_lshrrev_b32 v19, 5, v0\nv_lshlrev_b32 v19, 9, v19\nv_and_b32 v20, 31, v0\nv_lshl_add_u32 v19, v20, 2, v19")
wo_list = [(aa, cb) for aa in range(4) for cb in range(5)]
wo_n = [0]
def wo_dma():
    k = wo_n[0]; wo_n[0] += 1
    aa, cb = wo_list[k]
    a("s_mov_b32 m0, s46")
    a(f"s_add_u32 s46, s46, {1024 if cb < 4 else 16384}")
    a(f"buffer_load_dwordx4 v7, s[24:27], s47 offen{NT} lds", f"wo{k}")
    a(f"s_add_u32 s47, s47, {256 if cb < 4 else 16*1280 - 1024}")
skip_id = [0]
def soft_throttle(D):
    if len(a.vm) < D: return
    if P["SLOW"]:
        skip_id[0] += 1
        a(f"s_cbranch_vccnz L_sk{skip_id[0]}")
        a(f"s_waitcnt vmcnt({D-1})")
        a(f"L_sk{skip_id[0]}:")
    else:
        throttle(D)
if P["SLOW"]:
    a("s_and_b32 s54, s61, 3\ns_lshl_b32 s54, s54, 1\ns_add_u32 s54, s54, s6\ns_cmp_eq_u32 s54, 3\ns_cselect_b64 vcc, -1, 0")
issued = NE
def depth():
    return P["DC0"] if issued < P["NC0"] else P["DC1"]
if P["IL"]:
    while s3_n[0] < 16:
        for f in (seg3_dma, wo_dma):
            if issued < P["NC0"]: soft_throttle(depth())
            else: throttle(depth())
            f(); issued += 1
else:
    while s3_n[0] < 16:
        if issued < P["NC0"]: soft_throttle(depth())
        else: throttle(depth())
        seg3_dma(); issued += 1
NW1 = 20 - P["HB"]
while any(t and t.startswith("uv") for t in a.vm) and wo_n[0] < NW1:
    throttle(P["DC2"]); wo_dma()
a.wait_vm("uv15")
stamp(6)
for t in range(4):
    for s in range(4):
        for u in range(2):
            rr = (t * 4 + s) * 4 + 2 * u
            a(f"ds_read_b64_tr_b16 a[{rr}:{rr+1}], v{24+t} offset:{(4*s+2*u)*128}")
while wo_n[0] < NW1:
    throttle(P["DC2"]); wo_dma()
S_EARLY = [0, 1] if P["HB"] == 0 else ([0] if P["HB"] <= 10 else [])
S_LATE = [x for x in (0, 1) if x not in S_EARLY]
def wo_tr(s, tag=None):
    for cb in range(5):
        for e in range(2):
            for u in range(2):
                rr = 64 + ((cb * 2 + e) * 2 + s) * 4 + 2 * u
                a(f"ds_read_b64_tr_b16 a[{rr}:{rr+1}], v{WOA[(e, s)]} offset:{(4*u*5+cb)*1024}", tag and f"{tag}{s}_{cb}_{e}")
def wo_reads():
    if not S_EARLY: return
    a.wait_vm(f"wo{10*len(S_EARLY)-1}")
    a("s_barrier")
    fs("C", "barW")
    for s in S_EARLY: wo_tr(s)
if P["WOE"]: wo_reads()
a.wait_lg_all()
a("s_barrier")
stamp(9)
stamp_flush()
a(f"s_lshl_b32 s54, s61, 6\ns_lshl_b32 s55, s3, 4\ns_add_u32 s54, s54, s55")
a(f"s_lshl_b32 s17, s54, 10\ns_add_u32 s17, s17, {PO}")
a(f"s_mul_i32 s18, s3, {16*ROW}\ns_add_u32 s18, s18, {GAT}")
a("s_mov_b32 s13, s62\ns_mov_b32 s16, 0")
if P["STG"]:
    a(f"s_mul_i32 s15, s6, {8*ROW}\ns_add_u32 s18, s18, s15\ns_lshl_b32 s19, s6, 13\ns_add_u32 s17, s17, s19")
    a(f"s_lshl_b32 s15, s15, 1\ns_sub_u32 s15, 0, s15\ns_lshl_b32 s19, s19, 1\ns_sub_u32 s19, 0, s19")
def gather_dma():
    for i in range(16):
        if P["STG"] and i == 8:
            a("s_add_u32 s18, s18, s15\ns_add_u32 s17, s17, s19")
        a("s_mov_b32 m0, s18")
        a(f"s_add_u32 s18, s18, {ROW}")
        a(f"buffer_load_dwordx4 v6, s[28:31], s17 offen sc1 lds", "gat")
        a("s_add_u32 s17, s17, 1024")
if P["STV"]:
    a(f"s_lshl_b32 s12, s4, 15\ns_lshl_b32 s55, s5, 4\ns_add_u32 s12, s12, s55\ns_add_u32 s12, s12, {ST}")
    a("v_lshlrev_b32 v21, 9, v0")
    a("v_cmp_eq_u32 s[56:57], 1, v16\nv_cmp_lt_u32 s[58:59], 31, v0")
    a("L_st:")
    a("buffer_load_dwordx4 v[120:123], v21, s[28:31], s12 offen sc1")
    a("s_add_u32 s16, s16, 1")
    a("s_waitcnt vmcnt(0)")
    a("v_xor_b32 v122, s52, v122\nv_xor_b32 v123, s53, v123\nv_or_b32 v122, v122, v123")
    a("v_cmp_ne_u32 vcc, 0, v122")
    a(f"s_cmp_ge_u32 s16, {SPIN}\ns_cbranch_scc1 L_st_ok")
    a("s_cbranch_vccz L_st_ok")
    a("s_mov_b64 exec, vcc")
    a("s_branch L_st")
    a("L_st_ok:")
    setexec(-1)
    a.vm = []
    gather_dma()
    stamp(7)
    fs("C", "flags")
else:
    a(f"s_mul_i32 s12, s54, {P['STS']}\ns_add_u32 s12, s12, {ST}")
    SB = 36
    a("s_mov_b32 s8, s52\ns_mov_b32 s9, s53\ns_mov_b32 s14, s46\ns_mov_b32 s10, s47")
    a("s_lshl_b32 s54, s3, 7\nv_lshlrev_b32 v21, 3, v0\nv_add_u32 v22, s54, v21")
    a("L_st:")
    if P["STS"] == 16:
        for i in range(4):
            a(f"s_load_dwordx16 s[{SB+16*i}:{SB+16*i+15}], s[28:29], s12 offset:{64*i} glc")
    else:
        for i in range(16):
            a(f"s_load_dwordx4 s[{SB+4*i}:{SB+4*i+3}], s[28:29], s12 offset:{P['STS']*i} glc")
    a("s_add_u32 s16, s16, 1")
    a.wait_lg_all()
    for i in range(16):
        r = SB + 4 * i + 2
        a(f"s_xor_b64 s[{r}:{r+1}], s[{r}:{r+1}], s[8:9]")
        if i: a(f"s_or_b64 s[{SB+2}:{SB+3}], s[{SB+2}:{SB+3}], s[{r}:{r+1}]")
    a(f"s_cmp_ge_u32 s16, {SPIN}\ns_cbranch_scc1 L_st_ok")
    if P["PSL"]:
        a(f"s_cmp_eq_u64 s[{SB+2}:{SB+3}], 0\ns_cbranch_scc1 L_st_ok")
        a(f"s_sleep {P['PSL']}\ns_branch L_st")
    else:
        a(f"s_cmp_lg_u64 s[{SB+2}:{SB+3}], 0\ns_cbranch_scc1 L_st")
    a("L_st_ok:")
    if STAMP and not P["FINE"]: a("s_memrealtime s[10:11]" if False else "s_memrealtime s[100:101]")
    gather_dma()
    for i in range(16):
        a(f"v_writelane_b32 v120, s{SB+4*i}, {i}")
        a(f"v_writelane_b32 v121, s{SB+4*i+1}, {i}")
    a("s_mov_b32 s46, s14\ns_mov_b32 s47, s10")
    if P["HBP"] == 0:
        while wo_n[0] < 20: wo_dma()
    setexec(0xffff)
    a(f"ds_write_b64 v22, v[120:121] offset:{SL}")
    setexec(-1)
    a("v_cmp_eq_u32 s[56:57], 1, v16\nv_cmp_lt_u32 s[58:59], 31, v0")
    stamp(7)
    fs("C", "flags")
    a.wait_lg_all()
    a("s_barrier")
    fs("C", "barX")
    a(f"ds_read_b64 v[120:121], v21 offset:{SL}")
    a.wait_lg_all()
a("s_mov_b32 s63, 0")
def wave_reduce(op, r, t):
    for sh in (8, 4, 2, 1):
        a(f"{op}_dpp v{r}, v{r}, v{r} row_ror:{sh} row_mask:0xf bank_mask:0xf")
    for x in xlane_reduce(op, r, t): a(x)
a("v_mov_b32 v122, v120")
wave_reduce("v_max_f32", 122, 123)
a("v_sub_f32 v120, v120, v122\nv_exp_f32 v120, v120\nv_mul_f32 v121, v120, v121")
wave_reduce("v_add_f32", 121, 123)
a("v_rcp_f32 v121, v121\nv_mul_f32 v120, v120, v121\nv_cvt_pk_bf16_f32 v120, v120, v120")
a(f"ds_write_b16 v28, v120 offset:{FB}")
a.wait_lg_all()
a(f"ds_read_b128 v[96:99], v29 offset:{FB}\nds_read_b128 v[100:103], v29 offset:{FB+64}")
fs("C", "f")
if P["HBP"] == 1:
    while wo_n[0] < 20: wo_dma()
if not P["WOE"]: wo_reads()
a.wait_vm("gat")
stamp(8)
fs("C", "gat")
if P["HBP"] == 2:
    while wo_n[0] < 20: wo_dma()
a("L_regather:")
a.wait_lg_all()
a("s_barrier")
fs("C", "barY")
grd = [(T, s2, u) for T in range(8) for s2 in range(2) for u in range(2)]
def g_read(n):
    for _ in range(n):
        if not grd: return
        T, s2, u = grd.pop(0)
        rr = 32 + (T * 2 + s2) * 4 + 2 * u
        a(f"ds_read_b64_tr_b16 v[{rr}:{rr+1}], v23 offset:{(32*s2+16*u)*ROW + T*32}", f"g{T}_{s2}")
g_read(12)
def comb(T):
    for s2 in range(2):
        rr = 32 + (T * 2 + s2) * 4
        a.wait_lg(f"g{T}_{s2}")
        c = "0" if s2 == 0 else f"v[{128+4*T}:{131+4*T}]"
        a(f"v_mfma_f32_16x16x32_bf16 v[{128+4*T}:{131+4*T}], v[{rr}:{rr+3}], v[{96+4*s2}:{99+4*s2}], {c}")
        g_read(2)
def cvt3(s):
    T = 2 * s
    for k in range(4):
        a(f"v_cvt_pk_bf16_f32 v{160+4*s+k}, v{128+4*T+2*k}, v{129+4*T+2*k}")
def g3(s):
    for t in range(4):
        rr = (t * 4 + s) * 4
        c = "0" if s == 0 else f"v[{176+4*t}:{179+4*t}]"
        a(f"v_mfma_f32_16x16x32_bf16 v[{176+4*t}:{179+4*t}], v[{160+4*s}:{163+4*s}], a[{rr}:{rr+3}], {c}")
comb(0); comb(1); comb(2); comb(3); comb(4); comb(5); cvt3(0); comb(6); comb(7); cvt3(1); g3(0); cvt3(2); g3(1); cvt3(3); g3(2); g3(3)
fs("C", "g3issued")
a("v_cndmask_b32 v192, v176, v180, s[56:57]\nv_cndmask_b32 v193, v184, v188, s[56:57]\nv_cndmask_b32 v192, v192, v193, s[58:59]")
if P["DSA"]:
    a(f"ds_add_f32 v31, v192 offset:{R3}")
    a.wait_lg_all()
    a("s_barrier")
    fs("C", "barZ")
    for k in range(4):
        a(f"ds_read_b128 v[{196+4*k}:{199+4*k}], v30 offset:{R3 + (k>>1)*128 + (k&1)*16}", f"x{k}")
    for k in range(4):
        a.wait_lg(f"x{k}")
        a(f"v_cvt_pk_bf16_f32 v{36+2*k}, v{196+4*k}, v{197+4*k}\nv_cvt_pk_bf16_f32 v{37+2*k}, v{198+4*k}, v{199+4*k}")
    if P["EH"]:
        a("v_cmp_u_f32 vcc, v196, v196")
        a("s_cbranch_vccnz L_nan")
        a("L_nan_back:")
else:
    a(f"ds_write_b32 v31, v192 offset:{R3}")
    a.wait_vm_all()
    a.wait_lg_all()
    a("s_barrier")
    fs("C", "barZ")
    a(f"ds_read_b128 v[36:39], v30 offset:{R3}", "r3")
    if len(S_LATE) == 2: wo_tr(0, "w")
    a.wait_lg("r3")
    a("v_add_f32 v36, v36, v37\nv_add_f32 v38, v38, v39\nv_add_f32 v36, v36, v38")
    if P["EH"]: a("v_cmp_u_f32 vcc, v36, v36")
    a("v_cvt_pk_bf16_f32 v36, v36, v36")
    if P["EH"]:
        a("s_cbranch_vccnz L_nan")
        a("L_nan_back:")
    a(f"ds_write_b16 v28, v36 offset:{CX}", "cx")
    a.wait_lg("cx")
    a(f"ds_read_b128 v[36:39], v29 offset:{CX}", "x0")
    a(f"ds_read_b128 v[40:43], v29 offset:{CX+64}", "x1")
    a.wait_lg("x1")
fs("C", "ctx")
def outst(i):
    d0 = 48 + (2 * i) * 8; d1 = d0 + 8
    L = [f"v_cndmask_b32 v{100+2*i}, v{d0}, v{d0+4}, s[56:57]"]
    if i < 2:
        L += [f"v_cndmask_b32 v{101+2*i}, v{d1}, v{d1+4}, s[56:57]", f"v_cndmask_b32 v{100+2*i}, v{100+2*i}, v{101+2*i}, s[58:59]"]
    L += [f"v_min_u32 v{100+2*i}, -2, v{100+2*i}"]
    if i == 2: L += ["s_mov_b32 exec_hi, 0"]
    L += [f"buffer_store_dword v{100+2*i}, v19, s[28:31], s13 offen offset:{1024*i} sc1"]
    return L
fill = []
cnt = 0
order = [(cb, e, s) for cb in range(5) for e in range(2) for s in range(2)] if not S_LATE else \
        [(cb, e, s) for s in range(2) for cb in range(5) for e in range(2)]
for cb, e, s in order:
    rr = 64 + ((cb * 2 + e) * 2 + s) * 4
    d = 48 + (cb * 2 + e) * 4
    c = "0" if s == 0 else f"v[{d}:{d+3}]"
    a.wait_lg(f"w{s}_{cb}_{e}")
    a(f"v_mfma_f32_16x16x32_bf16 v[{d}:{d+3}], v[{36+4*s}:{39+4*s}], a[{rr}:{rr+3}], {c}")
    if S_LATE and s == 0:
        for u in range(2):
            r1 = 64 + ((cb * 2 + e) * 2 + 1) * 4 + 2 * u
            a(f"ds_read_b64_tr_b16 a[{r1}:{r1+1}], v{WOA[(e, 1)]} offset:{(4*u*5+cb)*1024}", f"w1_{cb}_{e}")
    cnt += 1
    if cnt == (12 if not S_LATE else 16): fill += outst(0)
    if fill: a(fill.pop(0))
fs("C", "g4issued")
for x in fill: a(x)
for x in outst(1): a(x)
for x in outst(2): a(x)
setexec(-1)
stamp(10)
stamp_flush()
if STAMP and not P["FINE"]:
    a("v_writelane_b32 v250, s100, 13\nv_writelane_b32 v251, s101, 13")
fs("C", "end")
fs_flush("C")
if P["EH"]:
    a("s_branch L_fin")
    a("L_nan:")
    a("s_add_u32 s63, s63, 1")
    a("s_cmp_ge_u32 s63, 4096\ns_cbranch_scc1 L_nan_back")
    a(f"s_sub_u32 s18, s18, {16*ROW}\ns_sub_u32 s17, s17, 16384")
    gather_dma()
    if P["DSA"]:
        a("s_barrier")
        a(f"ds_write_b32 v31, v15 offset:{R3}")
    a("s_waitcnt vmcnt(0)")
    a("s_branch L_regather")

a("L_fin:")
if STAMP:
    a(f"s_cmp_lg_u32 s3, {P['SW']}\ns_cbranch_scc1 L_end")
    a(f"s_mul_i32 s54, s2, {NS*8}\ns_add_u32 s54, s54, {STAMPS}")
    a("v_lshlrev_b32 v7, 3, v0\nv_mov_b32 v252, v250\nv_mov_b32 v253, v251")
    setexec((1 << NS) - 1)
    a("buffer_store_dwordx2 v[252:253], v7, s[28:31], s54 offen")
    if P["AMP"] >= 0:
        a(f"v_readlane_b32 s54, v250, {P['AMP']}\nv_readlane_b32 s55, v250, 0")
        a("s_nop 3\ns_sub_u32 s54, s54, s55")
        a("s_cmp_gt_u32 s54, 10000\ns_cbranch_scc1 L_end")
        a(f"s_mul_i32 s54, s54, {P['AMPK']}")
        a("s_memrealtime s[96:97]\ns_waitcnt lgkmcnt(0)\ns_add_u32 s54, s54, s96")
        a("L_amp:\ns_memrealtime s[96:97]\ns_waitcnt lgkmcnt(0)\ns_sub_u32 s55, s96, s54\ns_cmp_lt_i32 s55, 0\ns_cbranch_scc1 L_amp")
a("L_end:")
a("s_endpgm")
a.raw('''.section .rodata,"a"
.p2align 6
.amdhsa_kernel %s
  .amdhsa_next_free_vgpr 512
  .amdhsa_next_free_sgpr 102
  .amdhsa_accum_offset 256
  .amdhsa_group_segment_fixed_size 0
  .amdhsa_kernarg_size 120
  .amdhsa_user_sgpr_count 2
  .amdhsa_user_sgpr_kernarg_segment_ptr 1
  .amdhsa_system_sgpr_workgroup_id_x 1
.end_amdhsa_kernel''' % NAME)
sys.stdout.write(a.text())
```

```python
import sys, os, struct
sys.path.insert(0, os.path.dirname(__file__))
from asmlib import Asm

NAME = "concat_heads__compressed_kv_cla__compressed_kv_cla__decode_kernel"
P = dict(STAMP=0, FINE=0, AMP=-1, AMPK=20, NT=1, SPIN=200000, PF=1, SW=0,
         PVI=1, NEB=4, D1=6, NE=4, DC0=3, NC0=8, DC1=10, DC2=14, SLP=0, MASK=1, STV=0)
for x in sys.argv[1:]:
    k, v = x.split("="); P[k] = int(v)
NT = " nt" if P["NT"] else ""
SPIN = P["SPIN"]; STAMP = P["STAMP"]

QA, EP, OP, QX, PO, ST, STAMPS = 0x0, 0x10000, 0x18000, 0x80000, 0x100000, 0x500000, 0x800000
WSSZ = 0x900000
NCLR = 16
NS = 16
QP = 0; QB = QP + 2048; QO = QB + 256; SL = QO + 512; FB = SL + 512; R3 = FB + 512; CX = R3 + 1024
IMG = 5376
assert CX + 512 <= IMG and IMG % 256 == 0
ROW = 1056
XB = IMG + 64 * ROW
WUV = IMG; GAT = IMG; WO = IMG + 64 * ROW
LDS_BYTES = WO + 81920
WUK = WO + 16384
assert LDS_BYTES <= 163840
SCALE = (128 ** -0.5) * 1.4426950408889634
def f2u(x): return struct.unpack("<I", struct.pack("<f", x))[0]

a = Asm()
a.raw(open(os.path.join(os.path.dirname(__file__), "header.txt")).read().rstrip("\n"))
a.raw(f"; @launch grid=(256,1,1) block=(256,1,1) lds={LDS_BYTES}")
a.raw('.amdgcn_target "amdgcn-amd-amdhsa--gfx950"\n.text\n.globl %s\n.p2align 8\n.type %s,@function\n%s:' % (NAME, NAME, NAME))

def setexec(m):
    if m == -1: a("s_mov_b64 exec, -1")
    elif m < 64: a(f"s_mov_b64 exec, {m}")
    else:
        a(f"s_mov_b32 exec_lo, 0x{m & 0xffffffff:x}")
        a(f"s_mov_b32 exec_hi, 0x{m >> 32:x}")
FS0 = 70
fs_used = {}
def fs(role, name):
    if not P["FINE"]: return
    L = fs_used.setdefault(role, [])
    r = FS0 + 2 * len(L); assert r <= 98
    L.append(name)
    a(f"s_memtime s[{r}:{r+1}]")
def fs_flush(role):
    if not P["FINE"]: return
    a("s_waitcnt lgkmcnt(0)")
    for k, nm in enumerate(fs_used[role]):
        a(f"s_sub_u32 s{FS0+2*k+1}, s{FS0+2*k}, s{FS0}")
    a("v_mov_b32 v250, 0\nv_mov_b32 v251, 0")
    for k, nm in enumerate(fs_used[role]):
        a(f"s_mul_i32 s{FS0+2*k+1}, s{FS0+2*k+1}, 100")
        a(f"v_writelane_b32 v250, s{FS0+2*k+1}, {k}")
    sys.stderr.write(role + ": " + " ".join(f"{k}={nm}" for k, nm in enumerate(fs_used[role])) + "\n")
pend = []
def stamp(i):
    if not STAMP or P["FINE"]: return
    r = 72 + 2 * len(pend); assert r <= 98
    pend.append(i)
    a(f"s_memrealtime s[{r}:{r+1}]")
def stamp_flush():
    if not STAMP or P["FINE"]: return
    a.wait_lg_all()
    for k, i in enumerate(pend):
        a(f"v_writelane_b32 v250, s{72+2*k}, {i}")
        a(f"v_writelane_b32 v251, s{73+2*k}, {i}")
    pend.clear()
def xlane_reduce(op, r, t):
    return [f"v_mov_b32 v{t}, v{r}", f"v_permlane32_swap_b32 v{r}, v{t}", f"{op} v{r}, v{r}, v{t}",
            f"v_mov_b32 v{t}, v{r}", f"v_permlane16_swap_b32 v{r}, v{t}", f"{op} v{r}, v{r}, v{t}"]
def throttle(D):
    if len(a.vm) >= D:
        n = D - 1
        a(f"s_waitcnt vmcnt({n})")
        a.vm = a.vm[len(a.vm) - n:] if n else []
def sentinel_max(lo, dst, tmp):
    a(f"v_max3_u32 v{dst}, v{lo}, v{lo+1}, v{lo+2}\nv_max3_u32 v{tmp}, v{lo+3}, v{lo+4}, v{lo+5}")
    for r in range(lo + 6, lo + 30, 4):
        a(f"v_max3_u32 v{dst}, v{dst}, v{r}, v{r+1}\nv_max3_u32 v{tmp}, v{tmp}, v{r+2}, v{r+3}")
    a(f"v_max3_u32 v{dst}, v{dst}, v{lo+30}, v{lo+31}\nv_max_u32 v{dst}, v{dst}, v{tmp}")

if STAMP: a("s_memrealtime s[100:101]")
a("s_lshr_b32 s5, s2, 3")
a("s_add_u32 s6, s2, s5")
a("s_bfe_u32 s4, s6, 0x10002")
a("s_mul_i32 s7, s4, 48")
a("s_load_dwordx8 s[36:43], s[0:1], s7 offset:0")
a("s_cmp_ge_u32 s2, 256")
a("s_cbranch_scc1 L_end")
a("v_lshrrev_b32 v4, 6, v0")
a("s_and_b32 s6, s6, 3")
a("v_readfirstlane_b32 s3, v4")
a("v_and_b32 v0, 63, v0")
a("v_and_b32 v1, 15, v0")
a("v_lshrrev_b32 v2, 4, v0")
a("s_mov_b32 s10, 1280\ns_mov_b32 s11, 0x20000")
a("s_mov_b32 s14, 5242880\ns_mov_b32 s15, 0x20000")
a("s_lshl_b32 s57, s5, 8")
a("s_mul_i32 s54, s6, 160\ns_mul_i32 s55, s3, 40\ns_add_u32 s54, s54, s55")
a("s_lshl_b32 s58, s54, 1\ns_lshl_b32 s59, s54, 13\ns_add_u32 s59, s59, s57")
a("v_mul_u32_u24 v3, 81920, v2\nv_lshl_add_u32 v3, v1, 4, v3\nv_mul_u32_u24 v4, 20, v2")
a("s_waitcnt lgkmcnt(0)")
a("s_mov_b32 s12, s40\ns_mov_b32 s13, s41\ns_mov_b32 s8, s36\ns_mov_b32 s9, s37")
NQ = 10
WQ0 = 152; ACC = 120; TMP = 128; XF = 204
def wq_load(i):
    a(f"buffer_load_dwordx4 v[{WQ0+4*i}:{WQ0+3+4*i}], v3, s[12:15], s59 offen{NT}", f"wq{i}")
    if i < NQ - 1: a("s_add_u32 s59, s59, 8192")
D1 = P["D1"]
stamp(11)
wq_load(0)
a("buffer_load_dwordx4 v[192:195], v4, s[8:11], s58 offen", "x")
a("buffer_load_dword v196, v4, s[8:11], s58 offen offset:16", "x")
for i in range(1, D1): wq_load(i)
a("s_load_dwordx4 s[20:23], s[0:1], s7 offset:32")
a("s_load_dwordx4 s[32:35], s[0:1], 96")
a("s_load_dwordx2 s[28:29], s[0:1], 112")
if P["PF"]:
    a("s_getpc_b64 s[64:65]")
    a("L_pc:")
    a(f"s_sub_u32 s64, s64, L_pc-{NAME}\ns_subb_u32 s65, s65, 0")
    a("s_lshl_b32 s55, s5, 2\ns_add_u32 s55, s55, s3\ns_lshl_b32 s55, s55, 7")
    a(f"s_min_u32 s55, s55, L_end-{NAME}-64")
if STAMP:
    a("v_mov_b32 v250, 0\nv_mov_b32 v251, 0")
    a("v_writelane_b32 v250, s100, 0\nv_writelane_b32 v251, s101, 0")
a("v_mov_b32 v112, -1\nv_mov_b32 v113, -1\nv_mov_b32 v114, -1\nv_mov_b32 v115, -1")
a("v_lshlrev_b32 v6, 4, v0")
a("s_lshl_b32 s61, s4, 5\ns_add_u32 s61, s61, s5")
a(f"s_lshl_b32 s56, s4, 7\ns_add_u32 s56, s56, {EP}")
a("s_mov_b32 s16, s42\ns_mov_b32 s17, s43\ns_mov_b32 s18, 4194304\ns_mov_b32 s19, 0x20000")
a(f"s_mov_b32 s30, {WSSZ}\ns_mov_b32 s31, 0x20000")
a("v_lshlrev_b32 v5, 13, v2\nv_lshrrev_b32 v139, 1, v2\nv_xor_b32 v139, v139, v1")
a("s_lshl_b32 s54, s6, 7\ns_lshl_b32 s44, s3, 5\ns_add_u32 s54, s54, s44\ns_lshl_b32 s54, s54, 13\ns_add_u32 s44, s54, s57")
a(f"s_lshl_b32 s45, s3, 13\ns_add_u32 s45, s45, {WUK}")
a("v_lshlrev_b32 v138, 9, v1\nv_add_u32 v138, s45, v138")
for s in range(4):
    a(f"v_add_u32 v137, {4*s}, v2\nv_xor_b32 v137, v137, v1\nv_lshl_add_u32 v{144+s}, v137, 4, v138")
uk_n = [0]
def wuk_load():
    k = uk_n[0]; uk_n[0] += 1
    a(f"v_xor_b32 v138, {2*k}, v139\ns_mov_b32 m0, s45\nv_lshl_add_u32 v138, v138, 4, v5\ns_add_u32 s45, s45, 1024")
    a(f"buffer_load_dwordx4 v138, s[16:19], s44 offen{NT} lds", f"wuk{k}")
    a("s_add_u32 s44, s44, 32768")
for r in range(ACC, ACC + 8): a(f"v_mov_b32 v{r}, 0")
a("s_waitcnt lgkmcnt(0)")
a("s_load_dwordx2 s[52:53], s[28:29], s56")
if P["PF"]:
    a("s_load_dword s66, s[64:65], s55 offset:0")
    a("s_load_dword s67, s[64:65], s55 offset:64")
a("s_mov_b32 s24, s22\ns_mov_b32 s25, s23\ns_mov_b32 s26, 5242880\ns_mov_b32 s27, 0x20000")
a("s_mov_b32 s22, 4194304\ns_mov_b32 s23, 0x20000")
a("s_mov_b32 s50, s34\ns_mov_b32 s51, s35\ns_mov_b32 s34, 2560\ns_mov_b32 s35, 0x20000")
vm_first = list(a.vm)
a("s_lshl_b32 s63, s6, 3\ns_or_b32 s63, s63, s5")
a("s_cmp_lt_u32 s6, 2\ns_cbranch_scc1 L_setC")
a("s_mov_b32 s20, s38\ns_mov_b32 s21, s39")
a("s_lshl_b32 s46, s5, 1\ns_add_u32 s46, s46, s6\ns_sub_u32 s46, s46, 2")
a(f"s_mul_i32 s40, s3, {16*ROW}\ns_add_u32 s40, s40, {IMG}")
a("s_lshl_b32 s41, s46, 16\ns_lshl_b32 s54, s3, 14\ns_add_u32 s41, s41, s54")
a(f"s_mov_b32 s42, {ROW}\ns_mov_b32 s43, 1024")
for k in range(4): a(f"v_mov_b32 v{140+k}, v6")
a("s_branch L_set_done")
a("L_setC:")
a("s_lshl_b32 s54, s61, 1\ns_add_u32 s54, s54, s6\ns_mul_i32 s62, s54, 2560")
a(f"s_add_u32 s62, s62, {OP}")
a("s_mul_i32 s55, s3, 640\ns_add_u32 s54, s62, s55")
setexec(0xffffffffff)
a("buffer_store_dwordx4 v[112:115], v6, s[28:31], s54 offen sc1")
setexec(-1)
a(f"s_lshl_b32 s40, s3, 14\ns_add_u32 s40, s40, {WUV}")
a("s_lshl_b32 s41, s3, 20\ns_add_u32 s41, s41, s57\ns_lshl_b32 s54, s6, 7\ns_add_u32 s41, s41, s54")
a("s_mov_b32 s42, 1024\ns_mov_b32 s43, 65536")
a("v_and_b32 v7, 7, v0\nv_lshrrev_b32 v8, 3, v0\nv_lshlrev_b32 v8, 13, v8")
for k in range(4):
    a(f"v_xor_b32 v9, {2*k}, v7\nv_lshl_add_u32 v{140+k}, v9, 4, v8")
a("s_cmp_ge_u32 s63, 8\ns_cbranch_scc1 L_set_done")
a("s_lshl_b32 s54, s4, 3\ns_add_u32 s54, s54, s5\ns_lshl_b32 s54, s54, 12")
a("s_lshl_b32 s55, s3, 10\ns_add_u32 s54, s54, s55")
if QA: a(f"s_add_u32 s54, s54, {QA}")
a("buffer_store_dwordx4 v[112:115], v6, s[28:31], s54 offen sc1")
a("L_set_done:")
a.vm = list(vm_first)
old_ops = set(vm_first)
s3_n = [0]
def seg3_dma():
    k = s3_n[0]; s3_n[0] += 1
    a("s_mov_b32 m0, s40")
    a("s_add_u32 s40, s40, s42")
    a(f"buffer_load_dwordx4 v{140+((k>>1)&3)}, s[20:23], s41 offen{NT} lds", f"uv{k}")
    a("s_add_u32 s41, s41, s43")

nq = D1
for i in range(NQ):
    a.wait_vm("x" if i == 0 else f"wq{i}")
    if i == 0: stamp(12)
    if i == 5: stamp(13)
    if i == 9: stamp(14)
    if nq < NQ: wq_load(nq); nq += 1
    elif uk_n[0] < 8: wuk_load()
    if i == 0:
        for t in range(5):
            a(f"v_lshlrev_b32 v{XF+2*t}, 16, v{192+t}")
            a(f"v_and_b32 v{XF+1+2*t}, 0xffff0000, v{192+t}")
    if i == 3:
        a("s_cmp_ge_u32 s63, 8\ns_cbranch_scc1 L_noclr")
        a(f"s_waitcnt vmcnt({len([t for t in a.vm if t not in old_ops])})")
        a("s_barrier")
        a("s_cmp_lg_u32 s3, 0\ns_cbranch_scc1 L_noclr")
        a("v_mov_b32 v136, 0\nv_mov_b32 v137, 1")
        setexec(1)
        sv = list(a.vm)
        a("global_atomic_add v136, v137, s[50:51] sc1")
        a.vm = sv
        setexec(-1)
        a("L_noclr:")
    xp = XF + (i & ~1)
    sel = "op_sel_hi:[1,0,1]" if i % 2 == 0 else "op_sel:[0,1,0] op_sel_hi:[1,1,1]"
    for k in range(4):
        w = WQ0 + 4 * i + k; t = TMP + 2 * k
        a(f"v_lshlrev_b32 v{t}, 16, v{w}")
        a(f"v_and_b32 v{t+1}, 0xffff0000, v{w}")
    for k in range(4):
        t = TMP + 2 * k
        a(f"v_pk_fma_f32 v[{ACC+2*k}:{ACC+1+2*k}], v[{t}:{t+1}], v[{xp}:{xp+1}], v[{ACC+2*k}:{ACC+1+2*k}] {sel}")
for k in range(4): a(f"v_permlane32_swap_b32 v{ACC+2*k}, v{ACC+1+2*k}")
a("v_and_b32 v136, 1, v2\nv_lshlrev_b32 v136, 1, v136\nv_lshrrev_b32 v137, 1, v2\nv_or_b32 v136, v136, v137")
for k in range(4): a(f"v_add_f32 v{ACC+2*k}, v{ACC+2*k}, v{ACC+1+2*k}")
a("v_lshl_add_u32 v136, v1, 3, v136\nv_lshlrev_b32 v136, 2, v136")
a(f"v_permlane16_swap_b32 v{ACC}, v{ACC+2}")
a(f"v_permlane16_swap_b32 v{ACC+4}, v{ACC+6}")
a("s_lshl_b32 s54, s3, 9")
a("v_add_u32 v136, s54, v136")
a(f"v_add_f32 v{ACC}, v{ACC}, v{ACC+2}")
a(f"v_add_f32 v{ACC+4}, v{ACC+4}, v{ACC+6}")
a.wait_lg_all()
a("s_add_u32 s52, s52, 1")
a(f"ds_write_b32 v136, v{ACC} offset:{QP}")
a(f"ds_write_b32 v136, v{ACC+4} offset:{QP+16}")
while uk_n[0] < 8: wuk_load()
a("v_lshlrev_b32 v136, 3, v0")
a("v_mov_b32 v106, s52\nv_mov_b32 v107, s53")
a(f"s_lshl_b32 s60, s61, 12\ns_add_u32 s60, s60, {QX}\ns_lshl_b32 s54, s6, 10\ns_add_u32 s54, s54, s60")
a.wait_lg_all()
a("s_barrier")
stamp(2)
vm_A = list(a.vm)
NE = P["NE"]; NEB = max(P["NEB"], NE)
a("s_cmp_lg_u32 s3, 0\ns_cbranch_scc1 L_others")
for w in range(4):
    a(f"ds_read_b64 v[{112+2*w}:{113+2*w}], v136 offset:{QP+512*w}")
a("s_mov_b32 s55, 0")
a("v_mov_b32 v9, 0")
a.wait_lg_all()
a("v_pk_add_f32 v[112:113], v[112:113], v[114:115]")
a("v_pk_add_f32 v[108:109], v[116:117], v[118:119]")
a("v_pk_add_f32 v[104:105], v[112:113], v[108:109]")
a("buffer_store_dwordx4 v[104:107], v6, s[28:31], s54 offen sc1")
stamp(3)
a("L_qs:")
for jj in range(4):
    a(f"s_load_dwordx2 s[{64+2*jj}:{65+2*jj}], s[28:29], s60 offset:{jj*1024+1016} glc")
a("s_add_u32 s55, s55, 1")
a("s_waitcnt lgkmcnt(0)")
for jj in range(4): a(f"s_xor_b64 s[{64+2*jj}:{65+2*jj}], s[{64+2*jj}:{65+2*jj}], s[52:53]")
a("s_or_b64 s[64:65], s[64:65], s[66:67]\ns_or_b64 s[68:69], s[68:69], s[70:71]")
a(f"s_cmp_ge_u32 s55, {SPIN}\ns_cbranch_scc1 L_qg")
a("s_or_b64 s[64:65], s[64:65], s[68:69]\ns_cbranch_scc1 L_qs")
a("L_qg:")
def qgather():
    for jj in range(4):
        a(f"buffer_load_dwordx4 v[{120+4*jj}:{123+4*jj}], v6, s[28:31], s60 offen offset:{1024*jj} sc1")
    a("global_load_dword v136, v9, s[50:51] sc1")
qgather()
stamp(1)
a("s_barrier")
def early_seg3(lbl):
    for k in range(NE): seg3_dma()
    if NEB > NE:
        a(f"s_cmp_lt_u32 s6, 2\ns_cbranch_scc1 {lbl}a")
        for k in range(NE, NEB): seg3_dma()
        a(f"s_waitcnt vmcnt({NEB})")
        a(f"{lbl}a:")
    a(f"s_cmp_lt_u32 s6, 2\ns_cbranch_scc0 {lbl}b" if NEB > NE else "")
    a(f"s_waitcnt vmcnt({NE})")
    if NEB > NE: a(f"{lbl}b:")
early_seg3("L_e0")
a("L_qg_chk:")
a(f"v_min_u32 v136, {NCLR}, v136\nv_xor_b32 v136, {NCLR}, v136")
for jj in range(4):
    a(f"v_xor_b32 v{122+4*jj}, s52, v{122+4*jj}\nv_xor_b32 v{123+4*jj}, s53, v{123+4*jj}")
    a(f"v_or3_b32 v136, v136, v{122+4*jj}, v{123+4*jj}")
a("v_cmp_ne_u32 vcc, 0, v136")
a("s_cbranch_vccz L_qg_ok")
a("s_add_u32 s55, s55, 1")
a(f"s_cmp_ge_u32 s55, {SPIN}\ns_cbranch_scc1 L_qg_ok")
qgather()
a("s_waitcnt vmcnt(0)")
a("s_branch L_qg_chk")
a("L_qg_ok:")
a("v_pk_add_f32 v[120:121], v[120:121], v[124:125]")
a("v_pk_add_f32 v[128:129], v[128:129], v[132:133]")
a("v_pk_add_f32 v[120:121], v[120:121], v[128:129]")
a("v_lshlrev_b32 v9, 2, v0")
a("v_cvt_pk_bf16_f32 v120, v120, v121")
a(f"ds_write_b32 v9, v120 offset:{QB}")
a("s_branch L_qx_done")
a("L_others:")
if STAMP and not P["FINE"]:
    a("s_nop 0")
a("s_barrier")
s3_n[0] = 0
early_seg3("L_e1")
a("L_qx_done:")
a.vm = [f"uv{k}" for k in range(NE)]; a.lg = []
for s in range(4):
    for t in range(2):
        r = 32 + (t * 4 + s) * 4
        a(f"ds_read_b128 v[{r}:{r+3}], v{144+s} offset:{t*256}")
a("v_lshlrev_b32 v9, 4, v2")
a(f"s_mov_b32 s54, 0x{f2u(SCALE):08x}")
a("s_lshr_b32 s60, s61, 4\ns_lshl_b32 s60, s60, 4\ns_lshl_b32 s55, s6, 2\ns_add_u32 s55, s55, s3\ns_add_u32 s60, s60, s55\ns_lshl_b32 s60, s60, 10")
a("s_and_b32 s55, s5, 15\ns_lshl_b32 s55, s55, 6\ns_add_u32 s60, s60, s55")
if QA: a(f"s_add_u32 s60, s60, {QA}")
a("v_lshlrev_b32 v8, 2, v0")
a.wait_lg_all()
a("s_barrier")
stamp(4)
for s in range(4):
    a(f"ds_read_b128 v[{120+4*s}:{123+4*s}], v9 offset:{QB+64*s}", f"q{s}")
for s in range(4):
    a.wait_lg(f"q{s}")
    for t in range(2):
        r = 32 + (t * 4 + s) * 4
        c = "0" if s == 0 else f"v[{64+4*t}:{67+4*t}]"
        a(f"v_mfma_f32_16x16x32_bf16 v[{64+4*t}:{67+4*t}], v[{120+4*s}:{123+4*s}], v[{r}:{r+3}], {c}")
a("v_mul_f32 v64, s54, v64\nv_mul_f32 v68, s54, v68")
a("v_cvt_pk_bf16_f32 v64, v64, v68")
a("v_min_u32 v64, -2, v64")
setexec(0xffff)
a("buffer_store_dword v64, v8, s[28:31], s60 offen sc1", "qa")
setexec(-1)
stamp(5)
vm_role = list(a.vm); pend_role = list(pend)
a("s_cmp_lt_u32 s6, 2\ns_cbranch_scc1 L_roleC")

s3_n[0] = NEB
while s3_n[0] < 16: seg3_dma()
a("s_and_b32 s47, s3, 1\ns_lshr_b32 s48, s3, 1")
a("v_lshlrev_b32 v5, 6, v1\nv_lshl_add_u32 v5, v2, 4, v5")
a("s_lshl_b32 s54, s4, 15\ns_lshl_b32 s55, s47, 14\ns_add_u32 s54, s54, s55\ns_lshl_b32 s49, s48, 13\ns_add_u32 s60, s54, s49\ns_lshl_b32 s49, s48, 9")
if QA: a(f"s_add_u32 s60, s60, {QA}")
a("s_add_u32 s62, s60, 4096")
a(f"s_add_u32 s54, s49, {IMG}")
a(f"v_mul_u32_u24 v7, {ROW}, v1\nv_lshl_add_u32 v7, v2, 4, v7\nv_add_u32 v7, s54, v7")
a(f"v_lshrrev_b32 v8, 2, v0\nv_mul_u32_u24 v8, {ROW}, v8\nv_and_b32 v10, 3, v0\nv_lshl_add_u32 v8, v10, 3, v8\nv_add_u32 v8, s54, v8")
a(f"s_lshl_b32 s54, s3, 12\ns_add_u32 s54, s54, {XB}\nv_add_u32 v11, s54, v6")
a(f"s_xor_b32 s54, s3, 2\ns_lshl_b32 s54, s54, 12\ns_add_u32 s54, s54, {XB}\nv_add_u32 v12, s54, v6")
a("v_lshlrev_b32 v13, 18, v2\nv_lshl_add_u32 v13, v1, 4, v13\nv_lshlrev_b32 v14, 10, v1")
a("s_lshl_b32 s54, s4, 5\ns_lshl_b32 s55, s47, 4\ns_add_u32 s54, s54, s55\ns_lshl_b32 s54, s54, 6\ns_add_u32 s54, s54, s46")
a(f"s_lshl_b32 s64, s54, 10\ns_add_u32 s64, s64, s49\ns_add_u32 s64, s64, {PO}")
a("s_add_u32 s65, s64, 65536\ns_add_u32 s66, s65, 65536\ns_add_u32 s67, s66, 65536")
if P["STV"]:
    a(f"s_lshl_b32 s68, s4, 6\ns_add_u32 s68, s68, s46\ns_lshl_b32 s68, s68, 9\ns_lshl_b32 s55, s47, 8\ns_add_u32 s68, s68, s55\ns_add_u32 s68, s68, {ST}")
    a("v_mov_b32 v14, v6")
else:
    a(f"s_lshl_b32 s68, s54, 4\ns_add_u32 s68, s68, {ST}")
a("s_mov_b32 s55, 0")
def qloads():
    for s in range(8):
        a(f"buffer_load_dwordx4 v[{32+4*s}:{35+4*s}], v5, s[28:31], s{60 if s < 4 else 62} offen offset:{1024*(s&3)} sc1")
qloads()
a("s_waitcnt vmcnt(0)")
stamp(6)
sentinel_max(32, 10, 108)
a("v_cmp_eq_u32 vcc, -1, v10")
a("s_mov_b64 s[58:59], vcc")
a("s_cbranch_vccz L_qa_first_ok")
a("s_mov_b64 exec, vcc")
qloads()
setexec(-1)
a("L_qa_first_ok:")
a("s_barrier")
for s in range(8):
    for t in range(4):
        r = (t * 8 + s) * 4
        a(f"ds_read_b128 a[{r}:{r+3}], v7 offset:{t*16*ROW + s*64}", f"S{s}_{t}")
pv = [(T, s2, u) for s2 in range(2) for T in range(16) for u in range(2)]
def pv_read():
    T, s2, u = pv.pop(0)
    rr = 128 + (T * 2 + s2) * 4 + 2 * u
    a(f"ds_read_b64_tr_b16 a[{rr}:{rr+1}], v8 offset:{(32*s2+16*u)*ROW + T*32}")
if not P["PVI"]:
    while pv: pv_read()
a("s_cmp_eq_u64 s[58:59], 0\ns_cbranch_scc1 L_qa_ok")
a("s_mov_b64 exec, s[58:59]")
a("L_qa_chk:")
a("s_waitcnt vmcnt(0)")
sentinel_max(32, 10, 108)
a("v_cmp_eq_u32 vcc, -1, v10")
a("s_cbranch_vccz L_qa_ok")
a("s_add_u32 s55, s55, 1")
a(f"s_cmp_ge_u32 s55, {SPIN}\ns_cbranch_scc1 L_qa_ok")
a("s_mov_b64 exec, vcc")
qloads()
a("s_branch L_qa_chk")
a("L_qa_ok:")
setexec(-1)
a.vm = []
stamp(7)
fs("B", "qok")
for s in range(8):
    for t in range(4):
        r = (t * 8 + s) * 4
        c = "0" if s == 0 else f"v[{64+4*t}:{67+4*t}]"
        a.wait_lg(f"S{s}_{t}")
        a(f"v_mfma_f32_16x16x32_bf16 v[{64+4*t}:{67+4*t}], a[{r}:{r+3}], v[{32+4*s}:{35+4*s}], {c}")
        for _ in range(3 if (s * 4 + t) % 3 == 0 else 2):
            if pv: pv_read()
fs("B", "Sissued")
for t in range(4):
    a(f"ds_write_b128 v11, v[{64+4*t}:{67+4*t}] offset:{t*1024}")
a.wait_lg_all()
fs("B", "xw")
a("s_barrier")
fs("B", "bar")
for t in range(4):
    a(f"ds_read_b128 v[{80+4*t}:{83+4*t}], v12 offset:{t*1024}", f"x{t}")
for t in range(4):
    a.wait_lg(f"x{t}")
    for k in range(4):
        a(f"v_add_f32 v{64+4*t+k}, v{64+4*t+k}, v{80+4*t+k}")
    if t == 0: a("v_max3_f32 v104, v64, v65, v66\nv_mov_b32 v105, v67")
    else: a(f"v_max3_f32 v104, v104, v{64+4*t}, v{65+4*t}\nv_max3_f32 v105, v105, v{66+4*t}, v{67+4*t}")
fs("B", "added")
a("v_max_f32 v104, v104, v105")
for x in xlane_reduce("v_max_f32", 104, 108): a(x)
for r in range(64, 72): a(f"v_sub_f32 v{r}, v{r}, v104")
for r in range(64, 72): a(f"v_exp_f32 v{r}, v{r}")
for k in range(4): a(f"v_cvt_pk_bf16_f32 v{96+k}, v{64+2*k}, v{65+2*k}")
fs("B", "P0")
fill = []
for r in range(72, 80): fill += [f"v_sub_f32 v{r}, v{r}, v104"]
for r in range(72, 80): fill += [f"v_exp_f32 v{r}, v{r}"]
for k in range(4, 8): fill += [f"v_cvt_pk_bf16_f32 v{96+k}, v{64+2*k}, v{65+2*k}"]
for T in range(16):
    rr = 128 + (T * 2) * 4
    a(f"v_mfma_f32_16x16x32_bf16 v[{128+4*T}:{131+4*T}], v[96:99], a[{rr}:{rr+3}], 0")
    budget = 8
    while fill and budget > 0:
        x = fill.pop(0); a(x); budget -= 8 if "exp" in x else 4
for x in fill: a(x)
fs("B", "PV0")
sums = [f"v_add_f32 v{64+k}, v{64+k}, v{72+k}" for k in range(8)] + [f"v_add_f32 v{64+k}, v{64+k}, v{68+k}" for k in range(4)] + \
       ["v_add_f32 v64, v64, v65", "v_add_f32 v66, v66, v67", "v_add_f32 v105, v64, v66"] + xlane_reduce("v_add_f32", 105, 108)
def pack(Q):
    L = []
    for r in range(4):
        d = 192 + (Q * 4 + r) * 4
        for k in range(4):
            T = 8 * Q + 2 * k
            L.append(f"v_cvt_pk_bf16_f32 v{d+k}, v{128+4*T+r}, v{128+4*(T+1)+r}")
        L.append(f"buffer_store_dwordx4 v[{d}:{d+3}], v13, s[28:31], s{64+r} offen offset:{Q*256} sc1")
    return L
fill = sums[:16]
sums = sums[16:]
for T in range(16):
    rr = 128 + (T * 2 + 1) * 4
    a(f"v_mfma_f32_16x16x32_bf16 v[{128+4*T}:{131+4*T}], v[100:103], a[{rr}:{rr+3}], v[{128+4*T}:{131+4*T}]")
    if T == 9: fill += pack(0)
    for _ in range(2):
        if fill: a(fill.pop(0))
fs("B", "PV1")
for x in fill: a(x)
for x in pack(1): a(x)
fs("B", "stored")
for x in sums: a(x)
stamp(8)
a.wait_vm_all()
fs("B", "vm0")
a("s_barrier")
a("s_cmp_lg_u32 s48, 0\ns_cbranch_scc1 L_b_done")
setexec(0xffff)
a("buffer_store_dwordx4 v[104:107], v14, s[28:31], s68 offen sc1")
setexec(-1)
a("L_b_done:")
fs_flush("B")
stamp(9)
stamp_flush()
a("s_cmp_lg_u32 s3, 0\ns_cbranch_scc1 L_fin")
a("s_cmp_ge_u32 s46, 20\ns_cbranch_scc1 L_fin")
a("v_lshrrev_b32 v7, 3, v0\nv_mul_u32_u24 v7, 2560, v7\nv_and_b32 v8, 7, v0\nv_lshl_add_u32 v7, v8, 4, v7")
a("s_mul_i32 s54, s4, 163840\ns_lshl_b32 s55, s46, 7\ns_add_u32 s54, s54, s55")
a(f"s_add_u32 s64, s54, {OP}")
for i in range(1, 8): a(f"s_add_u32 s{64+i}, s{63+i}, 20480")
a("s_mul_i32 s54, s4, 1280\ns_lshl_b32 s55, s46, 6\ns_add_u32 s54, s54, s55")
a("v_lshlrev_b32 v9, 3, v0")
a("s_mov_b32 s55, 0")
a("L_d_poll:")
for i in range(8):
    a(f"buffer_load_dwordx4 v[{32+4*i}:{35+4*i}], v7, s[28:31], s{64+i} offen sc1")
a("s_add_u32 s55, s55, 1")
a("s_waitcnt vmcnt(0)")
sentinel_max(32, 10, 108)
a("v_cmp_eq_u32 vcc, -1, v10")
a(f"s_cmp_ge_u32 s55, {SPIN}\ns_cbranch_scc1 L_d_ok")
a("s_cbranch_vccnz L_d_poll")
a("L_d_ok:")
for st, rng in ((16, range(32, 48)), (8, range(32, 40)), (4, range(32, 36))):
    for r in rng: a(f"v_add_f32 v{r}, v{r}, v{r+st}")
for k in range(4):
    a(f"v_add_f32_dpp v{36+k}, v{32+k}, v{32+k} row_ror:8 row_mask:0xf bank_mask:0xf")
for k in range(4): a(f"v_mov_b32 v{40+k}, v{36+k}")
for k in range(4): a(f"v_permlane16_swap_b32 v{36+k}, v{40+k}")
for k in range(4): a(f"v_add_f32 v{36+k}, v{36+k}, v{40+k}")
for k in range(4): a(f"v_mov_b32 v{40+k}, v{36+k}")
for k in range(4): a(f"v_permlane32_swap_b32 v{36+k}, v{40+k}")
for k in range(4): a(f"v_add_f32 v{36+k}, v{36+k}, v{40+k}")
a("v_cvt_pk_bf16_f32 v36, v36, v37\nv_cvt_pk_bf16_f32 v37, v38, v39")
setexec(0xff)
a("buffer_store_dwordx2 v[36:37], v9, s[32:35], s54 offen")
a("s_cmp_lg_u32 s46, 0\ns_cbranch_scc1 L_noep")
setexec(1)
a("buffer_store_dwordx2 v[106:107], v9, s[28:31], s56 offen sc1")
a("L_noep:")
setexec(-1)
stamp(10)
stamp_flush()
a("s_branch L_fin")

a("L_roleC:")
a.vm = vm_role; a.lg = []; a.hist = []
pend[:] = pend_role
s3_n[0] = NE
a("s_and_b32 s54, s3, 1\ns_lshl_b32 s54, s54, 3")
a("v_lshl_add_u32 v7, v2, 1, s54\nv_xor_b32 v7, v7, v1\nv_lshlrev_b32 v7, 4, v7")
a("v_mul_u32_u24 v8, 1280, v2\nv_add_u32 v7, v7, v8")
a("s_lshl_b32 s54, s5, 7\ns_lshl_b32 s55, s6, 6\ns_add_u32 s54, s54, s55\ns_lshl_b32 s55, s3, 2\ns_add_u32 s54, s54, s55\ns_mul_i32 s47, s54, 1280")
a(f"s_mul_i32 s46, s3, 5120\ns_add_u32 s46, s46, {WO}")
a("v_lshrrev_b32 v8, 2, v1\nv_and_b32 v10, 3, v0\nv_and_b32 v16, 1, v2\nv_and_b32 v17, 1, v10\nv_lshrrev_b32 v18, 1, v10")
a("v_lshlrev_b32 v19, 1, v8")
a("v_lshrrev_b32 v20, 1, v2\nv_lshl_add_u32 v20, v16, 6, v20\nv_lshl_add_u32 v20, v8, 4, v20")
a(f"s_lshl_b32 s54, s3, 14\ns_add_u32 s54, s54, {WUV}")
a("v_lshlrev_b32 v20, 7, v20\nv_lshl_add_u32 v20, v17, 3, v20\nv_add_u32 v20, s54, v20")
for t in range(4):
    a(f"v_add_u32 v21, {2*t}, v18\nv_xor_b32 v21, v21, v19\nv_lshl_add_u32 v{24+t}, v21, 4, v20")
a("v_lshlrev_b32 v13, 3, v16\nv_lshl_add_u32 v13, v8, 1, v13")
a("s_lshl_b32 s54, s3, 2\nv_add_u32 v14, s54, v18")
a("v_xor_b32 v21, v14, v13\nv_add_u32 v14, 2, v14\nv_xor_b32 v14, v14, v13")
a(f"v_mul_u32_u24 v22, 5120, v2\nv_lshl_add_u32 v22, v8, 8, v22\nv_lshl_add_u32 v22, v17, 3, v22\nv_add_u32 v22, {WO}, v22")
a("v_lshl_add_u32 v12, v21, 4, v22\nv_lshl_add_u32 v13, v14, 4, v22")
a("v_add_u32 v14, 40960, v12\nv_add_u32 v11, 40960, v13")
WOA = {(0, 0): 12, (1, 0): 13, (0, 1): 14, (1, 1): 11}
a(f"v_lshrrev_b32 v23, 2, v0\nv_mul_u32_u24 v23, {ROW}, v23\nv_lshl_add_u32 v23, v10, 3, v23")
a(f"s_lshl_b32 s54, s3, 8\ns_add_u32 s54, s54, {GAT}\nv_add_u32 v23, s54, v23")
a("v_and_b32 v28, 32, v0\nv_lshl_add_u32 v28, v8, 3, v28\nv_lshl_add_u32 v28, v16, 2, v28\nv_add_u32 v28, v28, v10")
a("s_lshl_b32 s54, s3, 7\nv_lshl_add_u32 v28, v28, 1, s54\nv_lshl_add_u32 v29, v2, 4, s54")
a("v_lshlrev_b32 v30, 4, v0\ns_lshl_b32 s55, s3, 2\nv_add_u32 v31, s55, v30")
a("s_lshl_b32 s55, s3, 7\ns_add_u32 s62, s62, s55")
a("v_lshrrev_b32 v19, 5, v0\nv_lshlrev_b32 v19, 9, v19\nv_and_b32 v20, 31, v0\nv_lshl_add_u32 v19, v20, 2, v19")
while s3_n[0] < 16:
    throttle(P["DC0"] if s3_n[0] < P["NC0"] else P["DC1"]); seg3_dma()
wo_list = [(aa, cb) for aa in range(4) for cb in range(5)]
def wo_dma(k):
    aa, cb = wo_list[k]
    a("s_mov_b32 m0, s46")
    a(f"s_add_u32 s46, s46, {1024 if cb < 4 else 16384}")
    a(f"buffer_load_dwordx4 v7, s[24:27], s47 offen{NT} lds", f"wo{k}")
    a(f"s_add_u32 s47, s47, {256 if cb < 4 else 16*1280 - 1024}")
a("s_barrier")
k = 0
while any(t and t.startswith("uv") for t in a.vm) and k < 20:
    throttle(P["DC2"]); wo_dma(k); k += 1
a.wait_vm("uv15")
stamp(6)
for t in range(4):
    for s in range(4):
        for u in range(2):
            rr = (t * 4 + s) * 4 + 2 * u
            a(f"ds_read_b64_tr_b16 a[{rr}:{rr+1}], v{24+t} offset:{(4*s+2*u)*128}")
while k < 20:
    throttle(P["DC2"]); wo_dma(k); k += 1
a.wait_lg_all()
a("s_barrier")
stamp(9)
stamp_flush()
a(f"s_lshl_b32 s54, s61, 6\ns_lshl_b32 s55, s3, 4\ns_add_u32 s54, s54, s55")
a(f"s_lshl_b32 s17, s54, 10\ns_add_u32 s17, s17, {PO}")
a(f"s_mul_i32 s18, s3, {16*ROW}\ns_add_u32 s18, s18, {GAT}")
a("s_mov_b32 s13, s62\ns_mov_b32 s16, 0")
def gather_dma():
    for i in range(16):
        a("s_mov_b32 m0, s18")
        a(f"s_add_u32 s18, s18, {ROW}")
        a(f"buffer_load_dwordx4 v6, s[28:31], s17 offen sc1 lds", "gat")
        a("s_add_u32 s17, s17, 1024")
if P["STV"]:
    a(f"s_lshl_b32 s12, s4, 15\ns_lshl_b32 s55, s5, 4\ns_add_u32 s12, s12, s55\ns_add_u32 s12, s12, {ST}")
    a("v_lshlrev_b32 v21, 9, v0")
    a("v_cmp_eq_u32 s[56:57], 1, v16\nv_cmp_lt_u32 s[58:59], 31, v0")
    a("L_st:")
    a("buffer_load_dwordx4 v[120:123], v21, s[28:31], s12 offen sc1")
    a("s_add_u32 s16, s16, 1")
    a("s_waitcnt vmcnt(0)")
    a("v_xor_b32 v122, s52, v122\nv_xor_b32 v123, s53, v123\nv_or_b32 v122, v122, v123")
    a("v_cmp_ne_u32 vcc, 0, v122")
    a(f"s_cmp_ge_u32 s16, {SPIN}\ns_cbranch_scc1 L_st_ok")
    a("s_cbranch_vccz L_st_ok")
    a("s_mov_b64 exec, vcc")
    a("s_branch L_st")
    a("L_st_ok:")
    setexec(-1)
    a.vm = []
    gather_dma()
    stamp(7)
    fs("C", "flags")
else:
    a(f"s_lshl_b32 s12, s54, 4\ns_add_u32 s12, s12, {ST}")
    SB = 36
    a("s_mov_b32 s8, s52\ns_mov_b32 s9, s53")
    a("s_lshl_b32 s54, s3, 7\nv_lshlrev_b32 v21, 3, v0\nv_add_u32 v22, s54, v21")
    a("L_st:")
    for i in range(4):
        a(f"s_load_dwordx16 s[{SB+16*i}:{SB+16*i+15}], s[28:29], s12 offset:{64*i} glc")
    a("s_add_u32 s16, s16, 1")
    a.wait_lg_all()
    for i in range(16):
        r = SB + 4 * i + 2
        a(f"s_xor_b64 s[{r}:{r+1}], s[{r}:{r+1}], s[8:9]")
        if i: a(f"s_or_b64 s[{SB+2}:{SB+3}], s[{SB+2}:{SB+3}], s[{r}:{r+1}]")
    a(f"s_cmp_ge_u32 s16, {SPIN}\ns_cbranch_scc1 L_st_ok")
    a(f"s_cmp_lg_u64 s[{SB+2}:{SB+3}], 0\ns_cbranch_scc1 L_st")
    a("L_st_ok:")
    gather_dma()
    for i in range(16):
        a(f"v_writelane_b32 v120, s{SB+4*i}, {i}")
        a(f"v_writelane_b32 v121, s{SB+4*i+1}, {i}")
    setexec(0xffff)
    a(f"ds_write_b64 v22, v[120:121] offset:{SL}")
    setexec(-1)
    a("v_cmp_eq_u32 s[56:57], 1, v16\nv_cmp_lt_u32 s[58:59], 31, v0")
    stamp(7)
    fs("C", "flags")
    a.wait_lg_all()
    a("s_barrier")
    fs("C", "barX")
    a(f"ds_read_b64 v[120:121], v21 offset:{SL}")
    a.wait_lg_all()
def wave_reduce(op, r, t):
    for sh in (8, 4, 2, 1):
        a(f"{op}_dpp v{r}, v{r}, v{r} row_ror:{sh} row_mask:0xf bank_mask:0xf")
    for x in xlane_reduce(op, r, t): a(x)
a("v_mov_b32 v122, v120")
wave_reduce("v_max_f32", 122, 123)
a("v_sub_f32 v120, v120, v122\nv_exp_f32 v120, v120\nv_mul_f32 v121, v120, v121")
wave_reduce("v_add_f32", 121, 123)
a("v_rcp_f32 v121, v121\nv_mul_f32 v120, v120, v121\nv_cvt_pk_bf16_f32 v120, v120, v120")
a(f"ds_write_b16 v28, v120 offset:{FB}")
a.wait_lg_all()
a(f"ds_read_b128 v[96:99], v29 offset:{FB}\nds_read_b128 v[100:103], v29 offset:{FB+64}")
fs("C", "f")
a.wait_vm("wo19")
a("s_barrier")
fs("C", "barW")
for s in range(2):
    for cb in range(5):
        for e in range(2):
            for u in range(2):
                rr = 64 + ((cb * 2 + e) * 2 + s) * 4 + 2 * u
                a(f"ds_read_b64_tr_b16 a[{rr}:{rr+1}], v{WOA[(e, s)]} offset:{(4*u*5+cb)*1024}")
a.wait_vm_all()
stamp(8)
fs("C", "gat")
a("s_barrier")
fs("C", "barY")
for T in range(8):
    for s2 in range(2):
        for u in range(2):
            rr = 32 + (T * 2 + s2) * 4 + 2 * u
            a(f"ds_read_b64_tr_b16 v[{rr}:{rr+1}], v23 offset:{(32*s2+16*u)*ROW + T*32}", f"g{T}_{s2}")
def comb(T):
    for s2 in range(2):
        rr = 32 + (T * 2 + s2) * 4
        a.wait_lg(f"g{T}_{s2}")
        c = "0" if s2 == 0 else f"v[{128+4*T}:{131+4*T}]"
        a(f"v_mfma_f32_16x16x32_bf16 v[{128+4*T}:{131+4*T}], v[{rr}:{rr+3}], v[{96+4*s2}:{99+4*s2}], {c}")
def cvt3(s):
    T = 2 * s
    for k in range(4):
        a(f"v_cvt_pk_bf16_f32 v{160+4*s+k}, v{128+4*T+2*k}, v{129+4*T+2*k}")
def g3(s):
    for t in range(4):
        rr = (t * 4 + s) * 4
        c = "0" if s == 0 else f"v[{176+4*t}:{179+4*t}]"
        a(f"v_mfma_f32_16x16x32_bf16 v[{176+4*t}:{179+4*t}], v[{160+4*s}:{163+4*s}], a[{rr}:{rr+3}], {c}")
comb(0); comb(1); comb(2); comb(3); comb(4); comb(5); cvt3(0); comb(6); comb(7); cvt3(1); g3(0); cvt3(2); g3(1); cvt3(3); g3(2); g3(3)
fs("C", "g3issued")
a("v_cndmask_b32 v192, v176, v180, s[56:57]\nv_cndmask_b32 v193, v184, v188, s[56:57]\nv_cndmask_b32 v192, v192, v193, s[58:59]")
a(f"ds_write_b32 v31, v192 offset:{R3}")
a.wait_lg_all()
a("s_barrier")
fs("C", "barZ")
a(f"ds_read_b128 v[36:39], v30 offset:{R3}")
a.wait_lg_all()
a("v_add_f32 v36, v36, v37\nv_add_f32 v38, v38, v39\nv_add_f32 v36, v36, v38\nv_cvt_pk_bf16_f32 v36, v36, v36")
a(f"ds_write_b16 v28, v36 offset:{CX}")
a.wait_lg_all()
a(f"ds_read_b128 v[36:39], v29 offset:{CX}", "x0")
a(f"ds_read_b128 v[40:43], v29 offset:{CX+64}", "x1")
a.wait_lg("x1")
fs("C", "ctx")
def outst(i):
    d0 = 48 + (2 * i) * 8; d1 = d0 + 8
    L = [f"v_cndmask_b32 v{100+2*i}, v{d0}, v{d0+4}, s[56:57]"]
    if i < 2:
        L += [f"v_cndmask_b32 v{101+2*i}, v{d1}, v{d1+4}, s[56:57]", f"v_cndmask_b32 v{100+2*i}, v{100+2*i}, v{101+2*i}, s[58:59]"]
    L += [f"v_min_u32 v{100+2*i}, -2, v{100+2*i}"]
    if i == 2: L += ["s_mov_b32 exec_hi, 0"]
    L += [f"buffer_store_dword v{100+2*i}, v19, s[28:31], s13 offen offset:{1024*i} sc1"]
    return L
fill = []
cnt = 0
for cb in range(5):
    for e in range(2):
        for s in range(2):
            rr = 64 + ((cb * 2 + e) * 2 + s) * 4
            d = 48 + (cb * 2 + e) * 4
            c = "0" if s == 0 else f"v[{d}:{d+3}]"
            a(f"v_mfma_f32_16x16x32_bf16 v[{d}:{d+3}], v[{36+4*s}:{39+4*s}], a[{rr}:{rr+3}], {c}")
            cnt += 1
            if cnt == 12: fill += outst(0)
            if fill: a(fill.pop(0))
fs("C", "g4issued")
for x in fill: a(x)
for x in outst(1): a(x)
for x in outst(2): a(x)
setexec(-1)
stamp(10)
stamp_flush()
fs("C", "end")
fs_flush("C")

a("L_fin:")
if STAMP:
    a(f"s_cmp_lg_u32 s3, {P['SW']}\ns_cbranch_scc1 L_end")
    a(f"s_mul_i32 s54, s2, {NS*8}\ns_add_u32 s54, s54, {STAMPS}")
    a("v_lshlrev_b32 v7, 3, v0\nv_mov_b32 v252, v250\nv_mov_b32 v253, v251")
    setexec((1 << NS) - 1)
    a("buffer_store_dwordx2 v[252:253], v7, s[28:31], s54 offen")
    if P["AMP"] >= 0:
        a(f"v_readlane_b32 s54, v250, {P['AMP']}\nv_readlane_b32 s55, v250, 0")
        a("s_nop 3\ns_sub_u32 s54, s54, s55")
        a("s_cmp_gt_u32 s54, 10000\ns_cbranch_scc1 L_end")
        a(f"s_mul_i32 s54, s54, {P['AMPK']}")
        a("s_memrealtime s[96:97]\ns_waitcnt lgkmcnt(0)\ns_add_u32 s54, s54, s96")
        a("L_amp:\ns_memrealtime s[96:97]\ns_waitcnt lgkmcnt(0)\ns_sub_u32 s55, s96, s54\ns_cmp_lt_i32 s55, 0\ns_cbranch_scc1 L_amp")
a("L_end:")
a("s_endpgm")
a.raw('''.section .rodata,"a"
.p2align 6
.amdhsa_kernel %s
  .amdhsa_next_free_vgpr 512
  .amdhsa_next_free_sgpr 102
  .amdhsa_accum_offset 256
  .amdhsa_group_segment_fixed_size 0
  .amdhsa_kernarg_size 120
  .amdhsa_user_sgpr_count 2
  .amdhsa_user_sgpr_kernarg_segment_ptr 1
  .amdhsa_system_sgpr_workgroup_id_x 1
.end_amdhsa_kernel''' % NAME)
sys.stdout.write(a.text())
```
